```python
import torch

def _softmax(x, axis=-1):
    return torch.softmax(x, dim=axis)
def _gelu(x):
    return torch.nn.functional.gelu(x, approximate="tanh")
def _silu(x):
    return torch.nn.functional.silu(x)
def _sigmoid(x):
    return torch.sigmoid(x)
def _layernorm(x, axis=-1, eps=1e-5):
    m = x.mean(dim=axis, keepdim=True)
    v = x.var(dim=axis, keepdim=True, unbiased=False)
    return (x - m) / torch.sqrt(v + eps)
def _scatter_add(tgt, idx, src, axis=0):
    return tgt.clone().index_add_(axis, idx, src)
def _segment_sum(src, seg, n):
    out = torch.zeros((n,) + src.shape[1:], dtype=src.dtype)
    return out.index_add_(0, seg, src)
def _pad(x, pw):
    flat = tuple(v for pair in reversed(pw) for v in pair)
    return torch.nn.functional.pad(x, flat)

kernel_name = 'standalone__paged_block_table_kv_radixattention__sampling'

def setup_inputs():

    _w = (lambda a: (lambda t: t.to(torch.bfloat16) if t.is_floating_point() else t)(torch.as_tensor(a)))
    B, H, Hkv, Dh = 32, 16, 8, 256
    Lk = 2048
    bs = 16
    nb = max(2, Lk // bs)
    P = max(1, nb // 2)
    n_phys = P + B * (nb - P)
    shared = torch.arange(P, dtype=torch.int64)
    priv = P + torch.arange(B * (nb - P), dtype=torch.int64).reshape(B, nb - P)
    bt = torch.cat([torch.tile(shared[None, :], (B, 1)), priv], dim=1)
    ctx = nb * bs - (torch.arange(1, B + 1, dtype=torch.int64) * 2654435761) % max(1, (nb * bs - P * bs) // 2)
    return {
        "q": _w((lambda *s: torch.randn(*s, dtype=torch.bfloat16) * 0.8)(B, H, Dh)),
        "k_cache": _w((lambda *s: torch.randn(*s, dtype=torch.bfloat16) * 0.8)(n_phys, bs, Hkv, Dh)),
        "v_cache": _w((lambda *s: torch.randn(*s, dtype=torch.bfloat16) * 0.05)(n_phys, bs, Hkv, Dh)),
        "block_table": _w(bt.to(torch.int64)),
        "ctx_lens": _w(torch.as_tensor(ctx).to(torch.int64)),
    }

def reference(q, k_cache, v_cache, block_table, ctx_lens):
    B, H, Dh = q.shape
    n_phys, bs, Hkv, _ = k_cache.shape
    nb = block_table.shape[1]
    Lk = nb * bs
    rep = H // Hkv
    k = k_cache[block_table].reshape(B, Lk, Hkv, Dh)
    v = v_cache[block_table].reshape(B, Lk, Hkv, Dh)
    k = (lambda x, n, axis: torch.repeat_interleave(x, n, dim=axis))(k, rep, axis=2)
    v = (lambda x, n, axis: torch.repeat_interleave(x, n, dim=axis))(v, rep, axis=2)
    scores = torch.einsum("bhd,bkhd->bhk", q, k) * (Dh ** -0.5)
    pos = torch.arange(Lk)
    valid = pos[None, :] < ctx_lens[:, None]
    scores = torch.where(valid[:, None, :], scores, -1e9)
    p = _softmax(scores, axis=-1)
    return torch.einsum("bhk,bkhd->bhd", p, v)
```

```python
import sys

NAME = "standalone__paged_block_table_kv_radixattention__sampling"
NW = 4
NSH = 32
NPR = 256
NWG = NSH + NPR
NSLOT = 2 * NW
WS_O_BYTES = 512 * NSLOT * 1024
WS_ML_OFF = WS_O_BYTES
WS_BYTES = WS_O_BYTES + 512 * NSLOT * 8
KV_BYTES = 2112 * 65536
C_SCALE = 0.0625 * 1.4426950408889634

import struct
def f2u(f):
    return struct.unpack("<I", struct.pack("<f", f))[0]

out = []
def E(s=""):
    out.append(s)

V_TID, V_KOFF, V_VOFF, V_PHYS, V_J16, V_REM, V_M, V_L = 0, 1, 2, 3, 4, 5, 6, 7
V_T = 8
V_S = 16
V_P = 24
V_Q = 28
V_O = 60
V_K = 124
V_V = 188
V_END = 252

S_KSRD, S_VSRD, S_XSRD = 4, 8, 12
S_ARG = 16
S_W, S_KVH, S_SH, S_BQ, S_KVHOFF = 32, 33, 34, 35, 36
S_NSTEP, S_IDX, S_JA, S_JB = 37, 38, 39, 40
S_OFFA, S_OFFB = 41, 42
S_VO = 44
S_C = 52
S_SELLO, S_SELHI = 53, 54
S_T0, S_T1, S_T2, S_T3 = 55, 56, 57, 58
S_MASK = 60
S_CTX8 = 76
S_NJA, S_NJB = 84, 85
S_N = 86
S_TK = 88
S_BASE = 92
S_END = 96

def kreg(tile, i):
    return V_K + tile * 32 + i * 4
def vreg(tile, e, hf):
    return V_V + ((tile * 4 + e) * 2 + hf) * 4
def oreg(hf, jj):
    return V_O + (hf * 8 + jj) * 4
def q4(r):
    return f"v[{r}:{r+3}]"

def emit_next_offsets():
    E(f"  s_lshl_b32 s{S_T0}, s{S_IDX}, 1")
    E(f"  s_add_u32 s{S_T1}, s{S_T0}, 1")
    E(f"  v_readlane_b32 s{S_OFFA}, v{V_PHYS}, s{S_T0}")
    E(f"  v_readlane_b32 s{S_OFFB}, v{V_PHYS}, s{S_T1}")
    E(f"  v_readlane_b32 s{S_NJA}, v{V_J16}, s{S_T0}")
    E(f"  v_readlane_b32 s{S_NJB}, v{V_J16}, s{S_T1}")
    E(f"  s_nop 3")
    E(f"  s_lshl_b32 s{S_OFFA}, s{S_OFFA}, 16")
    E(f"  s_lshl_b32 s{S_OFFB}, s{S_OFFB}, 16")
    E(f"  s_add_u32 s{S_OFFA}, s{S_OFFA}, s{S_KVHOFF}")
    E(f"  s_add_u32 s{S_OFFB}, s{S_OFFB}, s{S_KVHOFF}")
    for t, so in ((0, S_OFFA), (1, S_OFFB)):
        for e in range(4):
            if e == 0:
                E(f"  s_mov_b32 s{S_VO + t*4}, s{so}")
            else:
                E(f"  s_add_u32 s{S_VO + t*4 + e}, s{so}, {e*4096}")

def emit_k_loads(nt):
    for t, so in ((0, S_OFFA), (1, S_OFFB)):
        for i in range(8):
            E(f"  buffer_load_dwordx4 {q4(kreg(t,i))}, v{V_KOFF}, s[{S_KSRD}:{S_KSRD+3}], s{so} offen offset:{i*64}{nt}")

def emit_v_loads(nt):
    for t in range(2):
        for e in range(4):
            for hf in range(2):
                E(f"  buffer_load_dwordx4 {q4(vreg(t,e,hf))}, v{V_VOFF}, s[{S_VSRD}:{S_VSRD+3}], s{S_VO+t*4+e} offen offset:{hf*256}{nt}")

def emit_xreduce(reg, tmp, op):
    E(f"  v_mov_b32 v{tmp}, v{reg}")
    E(f"  s_nop 1")
    E(f"  v_permlane32_swap_b32 v{reg}, v{tmp}")
    E(f"  s_nop 1")
    E(f"  {op} v{reg}, v{reg}, v{tmp}")
    E(f"  v_mov_b32 v{tmp}, v{reg}")
    E(f"  s_nop 1")
    E(f"  v_permlane16_swap_b32 v{reg}, v{tmp}")
    E(f"  s_nop 1")
    E(f"  {op} v{reg}, v{reg}, v{tmp}")

def emit_step(has_next, nt, tag):
    SA, SB = V_S, V_S + 4
    E(f"  s_waitcnt vmcnt(16)")
    for i in range(8):
        for t, sr in ((0, SA), (1, SB)):
            c = "0" if i == 0 else q4(sr)
            E(f"  v_mfma_f32_16x16x32_bf16 {q4(sr)}, {q4(kreg(t,i))}, {q4(V_Q+4*i)}, {c}")
    if has_next:
        E(f"  s_add_u32 s{S_IDX}, s{S_IDX}, 1")
        emit_next_offsets()
        emit_k_loads(nt)
    E(f"  v_subrev_u32 v{V_T}, s{S_JA}, v{V_REM}")
    E(f"  v_subrev_u32 v{V_T+1}, s{S_JB}, v{V_REM}")
    for r in range(4):
        E(f"  v_cmp_gt_i32 s[{S_MASK+2*r}:{S_MASK+2*r+1}], v{V_T}, {r}")
    for r in range(4):
        E(f"  v_cmp_gt_i32 s[{S_MASK+8+2*r}:{S_MASK+8+2*r+1}], v{V_T+1}, {r}")
    E(f"  v_mov_b32 v{V_T+2}, 0xff800000")
    E(f"  s_nop 7")
    for r in range(8):
        E(f"  v_cndmask_b32 v{V_S+r}, v{V_T+2}, v{V_S+r}, s[{S_MASK+2*r}:{S_MASK+2*r+1}]")
    E(f"  v_max3_f32 v{V_T}, v{V_S}, v{V_S+1}, v{V_S+2}")
    E(f"  v_max3_f32 v{V_T+1}, v{V_S+3}, v{V_S+4}, v{V_S+5}")
    E(f"  v_max3_f32 v{V_T}, v{V_S+6}, v{V_S+7}, v{V_T}")
    E(f"  v_max_f32 v{V_T}, v{V_T}, v{V_T+1}")
    emit_xreduce(V_T, V_T+1, "v_max_f32")
    E(f"  v_max_f32 v{V_T}, v{V_M}, v{V_T}")
    E(f"  v_max_f32 v{V_T+1}, 0xff7fffff, v{V_T}")
    E(f"  v_mul_f32 v{V_T+1}, s{S_C}, v{V_T+1}")
    E(f"  v_fma_f32 v{V_T+2}, v{V_M}, s{S_C}, -v{V_T+1}")
    E(f"  v_exp_f32 v{V_T+2}, v{V_T+2}")
    E(f"  v_mov_b32 v{V_M}, v{V_T}")
    for r in range(8):
        E(f"  v_fma_f32 v{V_S+r}, v{V_S+r}, s{S_C}, -v{V_T+1}")
    for r in range(8):
        E(f"  v_exp_f32 v{V_S+r}, v{V_S+r}")
    E(f"  v_cmp_neq_f32 vcc, 1.0, v{V_T+2}")
    E(f"  v_mul_f32 v{V_L}, v{V_L}, v{V_T+2}")
    E(f"  v_add_f32 v{V_T+3}, v{V_S}, v{V_S+1}")
    E(f"  v_add_f32 v{V_T+4}, v{V_S+2}, v{V_S+3}")
    E(f"  v_add_f32 v{V_T+5}, v{V_S+4}, v{V_S+5}")
    E(f"  v_add_f32 v{V_T+6}, v{V_S+6}, v{V_S+7}")
    E(f"  v_add_f32 v{V_T+3}, v{V_T+3}, v{V_T+4}")
    E(f"  v_add_f32 v{V_T+5}, v{V_T+5}, v{V_T+6}")
    E(f"  v_add_f32 v{V_T+3}, v{V_T+3}, v{V_T+5}")
    E(f"  v_add_f32 v{V_L}, v{V_L}, v{V_T+3}")
    for k in range(4):
        E(f"  v_cvt_pk_bf16_f32 v{V_P+k}, v{V_S+2*k}, v{V_S+2*k+1}")
    E(f"  s_cbranch_vccz L_noscale_{tag}")
    for r in range(64):
        E(f"  v_mul_f32 v{V_O+r}, v{V_O+r}, v{V_T+2}")
    E(f"L_noscale_{tag}:")
    if has_next:
        E(f"  s_waitcnt vmcnt(16)")
    else:
        E(f"  s_waitcnt vmcnt(0)")
    n = 0
    for hf in range(2):
        for jj in range(8):
            tq = V_T + (n & 1) * 4
            sel = S_SELHI if (jj & 1) else S_SELLO
            w = jj >> 1
            for t in range(2):
                for pp in range(2):
                    lo = vreg(t, 2*pp, hf) + w
                    hi = vreg(t, 2*pp+1, hf) + w
                    E(f"  v_perm_b32 v{tq + t*2 + pp}, v{hi}, v{lo}, s{sel}")
            E(f"  s_nop 1")
            E(f"  v_mfma_f32_16x16x32_bf16 {q4(oreg(hf,jj))}, {q4(tq)}, {q4(V_P)}, {q4(oreg(hf,jj))}")
            n += 1
    if has_next:
        emit_v_loads(nt)
        E(f"  s_mov_b32 s{S_JA}, s{S_NJA}")
        E(f"  s_mov_b32 s{S_JB}, s{S_NJB}")

def main_kernel():
    E(f".globl {NAME}_kernel")
    E(f".p2align 8")
    E(f".type {NAME}_kernel,@function")
    E(f"{NAME}_kernel:")
    E(f"  s_cmp_ge_u32 s2, {NWG}")
    E(f"  s_cbranch_scc1 L_main_end")
    E(f"  s_load_dwordx16 s[{S_ARG}:{S_ARG+15}], s[0:1], 0")
    VL, VCOL, VG, VBL = 8, 9, 10, 11
    E(f"  v_and_b32 v{VL}, 63, v0")
    E(f"  v_lshrrev_b32 v12, 6, v0")
    E(f"  v_and_b32 v{VCOL}, 15, v0")
    E(f"  v_readfirstlane_b32 s{S_W}, v12")
    E(f"  v_lshrrev_b32 v{VG}, 4, v{VL}")
    E(f"  s_and_b32 s{S_KVH}, s2, 7")
    E(f"  s_lshl_b32 s{S_KVHOFF}, s{S_KVH}, 9")
    E(f"  s_lshr_b32 s{S_BQ}, s2, 3")
    E(f"  s_cmp_lt_u32 s2, {NSH}")
    E(f"  s_cselect_b32 s{S_SH}, 1, 0")
    E(f"  s_mov_b32 s{S_C}, {f2u(C_SCALE):#x}")
    E(f"  s_mov_b32 s{S_SELLO}, 0x05040100")
    E(f"  s_mov_b32 s{S_SELHI}, 0x07060302")
    E(f"  s_cbranch_scc1 L_pro_shared")
    E(f"  s_sub_u32 s{S_BQ}, s{S_BQ}, {NSH//8}")
    E(f"  v_mov_b32 v{VBL}, s{S_BQ}")
    E(f"  s_lshl_b32 s{S_T0}, s{S_BQ}, 2")
    E(f"  s_waitcnt lgkmcnt(0)")
    E(f"  s_load_dword s{S_CTX8}, s[24:25], s{S_T0}")
    E(f"  s_lshl_b32 s{S_T1}, s{S_BQ}, 9")
    E(f"  s_waitcnt lgkmcnt(0)")
    E(f"  s_branch L_pro_common")
    E(f"L_pro_shared:")
    E(f"  v_lshrrev_b32 v{VBL}, 1, v{VCOL}")
    E(f"  s_lshl_b32 s{S_T0}, s{S_BQ}, 3")
    E(f"  v_add_u32 v{VBL}, s{S_T0}, v{VBL}")
    E(f"  s_lshl_b32 s{S_T0}, s{S_BQ}, 5")
    E(f"  s_waitcnt lgkmcnt(0)")
    E(f"  s_load_dwordx8 s[{S_CTX8}:{S_CTX8+7}], s[24:25], s{S_T0}")
    E(f"  s_mov_b32 s{S_T1}, 0")
    E(f"  s_waitcnt lgkmcnt(0)")
    for k in range(1, 8):
        E(f"  s_max_i32 s{S_CTX8}, s{S_CTX8}, s{S_CTX8+k}")
    E(f"L_pro_common:")
    E(f"  s_mov_b32 s{S_KSRD}, s18")
    E(f"  s_and_b32 s{S_KSRD+1}, s19, 0xffff")
    E(f"  s_mov_b32 s{S_KSRD+2}, {KV_BYTES}")
    E(f"  s_mov_b32 s{S_KSRD+3}, 0x00020000")
    E(f"  s_mov_b32 s{S_VSRD}, s20")
    E(f"  s_and_b32 s{S_VSRD+1}, s21, 0xffff")
    E(f"  s_mov_b32 s{S_VSRD+2}, {KV_BYTES}")
    E(f"  s_mov_b32 s{S_VSRD+3}, 0x00020000")
    E(f"  s_mov_b32 s{S_XSRD}, s22")
    E(f"  s_and_b32 s{S_XSRD+1}, s23, 0xffff")
    E(f"  s_mov_b32 s{S_XSRD+2}, 16384")
    E(f"  s_mov_b32 s{S_XSRD+3}, 0x00020000")
    E(f"  v_and_b32 v12, 31, v{VL}")
    E(f"  v_lshlrev_b32 v12, 4, v12")
    E(f"  v_lshrrev_b32 v13, 5, v{VL}")
    E(f"  v_lshl_add_u32 v13, v13, 9, v12")
    TB = V_K
    R0 = V_K + 64
    OWN = V_K + 68
    E(f"  s_mov_b32 s{S_T2}, 4096")
    E(f"  s_mov_b32 s{S_T3}, 8192")
    E(f"  s_mov_b32 s{S_BASE}, 12288")
    so = ["0", f"s{S_T2}", f"s{S_T3}", f"s{S_BASE}"]
    E(f"  buffer_load_dwordx4 {q4(R0)}, v12, s[{S_XSRD}:{S_XSRD+3}], 0 offen")
    E(f"  buffer_load_dwordx4 {q4(OWN)}, v12, s[{S_XSRD}:{S_XSRD+3}], s{S_T1} offen")
    for i in range(16):
        E(f"  buffer_load_dwordx4 {q4(TB+4*i)}, v13, s[{S_XSRD}:{S_XSRD+3}], {so[i>>2]} offen offset:{(i&3)*1024}")
    E(f"  v_lshlrev_b32 v14, 2, v{VBL}")
    E(f"  global_load_dword v{V_REM}, v14, s[24:25]")
    E(f"  v_and_b32 v14, 1, v{VCOL}")
    E(f"  v_lshl_add_u32 v14, v{VBL}, 4, v14")
    E(f"  s_lshl_b32 s{S_T0}, s{S_KVH}, 1")
    E(f"  v_add_u32 v14, s{S_T0}, v14")
    E(f"  v_lshlrev_b32 v15, 9, v14")
    E(f"  v_lshl_add_u32 v15, v{VG}, 4, v15")
    for i in range(8):
        E(f"  global_load_dwordx4 {q4(V_Q+4*i)}, v15, s[16:17] offset:{i*64}")
    E(f"  v_lshlrev_b32 v{V_KOFF}, 12, v{VCOL}")
    E(f"  v_lshl_add_u32 v{V_KOFF}, v{VG}, 4, v{V_KOFF}")
    E(f"  v_lshlrev_b32 v{V_VOFF}, 14, v{VG}")
    E(f"  v_lshl_add_u32 v{V_VOFF}, v{VCOL}, 4, v{V_VOFF}")
    E(f"  s_max_i32 s{S_CTX8}, s{S_CTX8}, 0")
    E(f"  s_min_i32 s{S_CTX8}, s{S_CTX8}, 2048")
    E(f"  s_add_u32 s{S_CTX8}, s{S_CTX8}, 15")
    E(f"  s_lshr_b32 s{S_CTX8}, s{S_CTX8}, 4")
    E(f"  v_mov_b32 v{V_M}, 0xff800000")
    E(f"  v_mov_b32 v{V_L}, 0")
    for r in range(64):
        E(f"  v_mov_b32 v{V_O+r}, 0")
    E(f"  s_waitcnt vmcnt(9)")
    for c in range(4):
        E(f"  v_xor_b32 v{12+c}, v{TB+c}, v{R0+c}")
        for i in range(1, 16):
            E(f"  v_xor_b32 v{TB+4*i+c}, v{TB+4*i+c}, v{R0+c}")
        for i in range(1, 16, 2):
            if i + 1 < 16:
                E(f"  v_or3_b32 v{12+c}, v{12+c}, v{TB+4*i+c}, v{TB+4*(i+1)+c}")
            else:
                E(f"  v_or_b32 v{12+c}, v{12+c}, v{TB+4*i+c}")
    E(f"  v_and_b32 v{TB}, 31, v{VL}")
    E(f"  v_lshlrev_b32 v{TB}, 2, v{TB}")
    for c in range(4):
        E(f"  v_cmp_ne_u32 s[{S_MASK+2*c}:{S_MASK+2*c+1}], 0, v{12+c}")
    for c in range(4):
        E(f"  v_add_u32 v{TB+1+c}, {c}, v{TB}")
        E(f"  v_cmp_gt_u32 s[{S_MASK+8+2*c}:{S_MASK+8+2*c+1}], s{S_CTX8}, v{TB+1+c}")
    E(f"  s_nop 3")
    E(f"  s_cmp_eq_u32 s{S_SH}, 1")
    E(f"  s_cselect_b32 s{S_T0}, -1, 0")
    for c in range(4):
        E(f"  s_or_b32 s{S_TK+c}, s{S_MASK+2*c}, s{S_MASK+2*c+1}")
        E(f"  s_xor_b32 s{S_TK+c}, s{S_TK+c}, s{S_T0}")
        E(f"  s_and_b32 s{S_TK+c}, s{S_TK+c}, s{S_MASK+8+2*c}")
    E(f"  s_mov_b32 s{S_N}, 0")
    for c in range(4):
        E(f"  v_mbcnt_lo_u32_b32 v12, s{S_TK+c}, 0")
        E(f"  v_add_u32 v12, s{S_N}, v12")
        E(f"  v_lshlrev_b32 v12, 3, v12")
        E(f"  v_mov_b32 v14, v{OWN+c}")
        E(f"  v_lshlrev_b32 v15, 4, v{TB+1+c}")
        E(f"  s_mov_b32 exec_lo, s{S_TK+c}")
        E(f"  s_mov_b32 exec_hi, 0")
        E(f"  ds_write_b64 v12, v[14:15]")
        E(f"  s_mov_b64 exec, -1")
        E(f"  s_bcnt1_i32_b32 s{S_T0}, s{S_TK+c}")
        E(f"  s_add_u32 s{S_N}, s{S_N}, s{S_T0}")
    lg = NW.bit_length() - 1
    E(f"  s_add_u32 s{S_T0}, s{S_N}, 1")
    E(f"  s_lshr_b32 s{S_T0}, s{S_T0}, 1")
    E(f"  s_lshr_b32 s{S_T1}, s{S_T0}, {lg}")
    E(f"  s_and_b32 s{S_T2}, s{S_T0}, {NW-1}")
    E(f"  s_mul_i32 s{S_T3}, s{S_W}, s{S_T1}")
    E(f"  s_min_u32 s{S_BASE}, s{S_W}, s{S_T2}")
    E(f"  s_add_u32 s{S_T3}, s{S_T3}, s{S_BASE}")
    E(f"  s_cmp_lt_u32 s{S_W}, s{S_T2}")
    E(f"  s_cselect_b32 s{S_BASE}, 1, 0")
    E(f"  s_add_u32 s{S_NSTEP}, s{S_T1}, s{S_BASE}")
    E(f"  s_lshl_b32 s{S_T3}, s{S_T3}, 1")
    E(f"  v_add_u32 v12, s{S_T3}, v{VL}")
    E(f"  v_lshlrev_b32 v13, 3, v12")
    E(f"  v_and_b32 v13, 0x3ff, v13")
    E(f"  s_waitcnt lgkmcnt(0)")
    E(f"  ds_read_b64 v[14:15], v13")
    E(f"  v_cmp_gt_u32 vcc, s{S_N}, v12")
    E(f"  v_mov_b32 v13, 0x100000")
    E(f"  s_waitcnt lgkmcnt(0)")
    E(f"  v_cndmask_b32 v{V_PHYS}, 0, v14, vcc")
    E(f"  v_cndmask_b32 v{V_J16}, v13, v15, vcc")
    E(f"  s_waitcnt vmcnt(0)")
    E(f"  v_lshlrev_b32 v12, 2, v{VG}")
    E(f"  v_max_i32 v{V_REM}, 0, v{V_REM}")
    E(f"  v_min_i32 v{V_REM}, 2048, v{V_REM}")
    E(f"  v_sub_u32 v{V_REM}, v{V_REM}, v12")
    E(f"  s_cmp_eq_u32 s{S_NSTEP}, 0")
    E(f"  s_cbranch_scc1 L_epilogue")
    E(f"  s_mov_b32 s{S_IDX}, 0")
    E(f"  s_cmp_eq_u32 s{S_SH}, 1")
    E(f"  s_cbranch_scc1 L_path_sh")
    for tag, nt in (("pr", " nt"), ("sh", "")):
        E(f"L_path_{tag}:")
        emit_next_offsets()
        emit_k_loads(nt)
        emit_v_loads(nt)
        E(f"  s_mov_b32 s{S_JA}, s{S_NJA}")
        E(f"  s_mov_b32 s{S_JB}, s{S_NJB}")
        E(f"  s_sub_u32 s{S_NSTEP}, s{S_NSTEP}, 1")
        E(f"  s_cmp_eq_u32 s{S_NSTEP}, 0")
        E(f"  s_cbranch_scc1 L_last_{tag}")
        E(f"L_loop_{tag}:")
        emit_step(True, nt, f"{tag}_a")
        E(f"  s_sub_u32 s{S_NSTEP}, s{S_NSTEP}, 1")
        E(f"  s_cmp_lg_u32 s{S_NSTEP}, 0")
        E(f"  s_cbranch_scc1 L_loop_{tag}")
        E(f"L_last_{tag}:")
        emit_step(False, nt, f"{tag}_b")
        if tag == "pr":
            E(f"  s_branch L_epilogue")
    E(f"L_epilogue:")
    E(f"  s_nop 15")
    emit_xreduce(V_L, V_T, "v_add_f32")
    E(f"  v_and_b32 v{VL}, 63, v0")
    E(f"  v_and_b32 v{VCOL}, 15, v0")
    E(f"  v_lshrrev_b32 v{VG}, 4, v{VL}")
    E(f"  s_cmp_eq_u32 s{S_SH}, 1")
    E(f"  s_cbranch_scc1 L_epi_sh")
    E(f"  v_mov_b32 v{VBL}, s{S_BQ}")
    E(f"  s_mov_b32 s{S_T1}, s{S_W}")
    E(f"  v_cmp_gt_u32 vcc, 2, v{VCOL}")
    E(f"  s_branch L_epi_common")
    E(f"L_epi_sh:")
    E(f"  v_lshrrev_b32 v{VBL}, 1, v{VCOL}")
    E(f"  s_lshl_b32 s{S_T0}, s{S_BQ}, 3")
    E(f"  v_add_u32 v{VBL}, s{S_T0}, v{VBL}")
    E(f"  s_add_u32 s{S_T1}, s{S_W}, {NW}")
    E(f"  s_mov_b64 vcc, -1")
    E(f"L_epi_common:")
    E(f"  v_and_b32 v14, 1, v{VCOL}")
    E(f"  v_lshl_add_u32 v14, v{VBL}, 4, v14")
    E(f"  s_lshl_b32 s{S_T0}, s{S_KVH}, 1")
    E(f"  v_add_u32 v14, s{S_T0}, v14")
    lgs = NSLOT.bit_length() - 1
    E(f"  v_lshlrev_b32 v14, {lgs}, v14")
    E(f"  v_add_u32 v14, s{S_T1}, v14")
    E(f"  v_lshlrev_b32 v15, 10, v14")
    E(f"  v_lshl_add_u32 v15, v{VG}, 7, v15")
    E(f"  v_lshlrev_b32 v14, 3, v14")
    E(f"  v_add_u32 v14, {WS_ML_OFF}, v14")
    E(f"  s_mov_b32 s{S_XSRD}, s30")
    E(f"  s_and_b32 s{S_XSRD+1}, s31, 0xffff")
    E(f"  s_mov_b32 s{S_XSRD+2}, {WS_BYTES}")
    E(f"  s_mov_b32 s{S_XSRD+3}, 0x00020000")
    E(f"  s_mov_b64 exec, vcc")
    for hf in range(2):
        for r in range(4):
            base = V_K + (hf*4 + r) * 8
            for jj in range(8):
                E(f"  v_mov_b32 v{base+jj}, v{oreg(hf,jj)+r}")
    for hf in range(2):
        for r in range(4):
            base = V_K + (hf*4 + r) * 8
            for half in range(2):
                E(f"  buffer_store_dwordx4 {q4(base+4*half)}, v15, s[{S_XSRD}:{S_XSRD+3}], 0 offen offset:{hf*512 + r*32 + half*16}")
    E(f"  v_cmp_eq_u32 vcc, 0, v{VG}")
    E(f"  s_and_b64 exec, exec, vcc")
    E(f"  v_mov_b32 v12, v{V_M}")
    E(f"  v_mov_b32 v13, v{V_L}")
    E(f"  buffer_store_dwordx2 v[12:13], v14, s[{S_XSRD}:{S_XSRD+3}], 0 offen")
    E(f"L_main_end:")
    E(f"  s_endpgm")

def combine_kernel():
    MASKRAW = -998244352.0 * 16.0
    E(f".globl combine_kernel")
    E(f".p2align 8")
    E(f".type combine_kernel,@function")
    E(f"combine_kernel:")
    E(f"  s_cmp_ge_u32 s2, 128")
    E(f"  s_cbranch_scc1 L_cmb_end")
    E(f"  s_load_dwordx16 s[16:31], s[0:1], 0")
    E(f"  v_lshrrev_b32 v1, 6, v0")
    E(f"  v_and_b32 v2, 63, v0")
    E(f"  s_nop 0")
    E(f"  v_readfirstlane_b32 s3, v1")
    E(f"  s_lshl_b32 s4, s2, 2")
    E(f"  s_nop 2")
    E(f"  s_add_u32 s4, s4, s3")
    E(f"  s_mov_b32 s52, {f2u(C_SCALE):#x}")
    E(f"  s_waitcnt lgkmcnt(0)")
    E(f"  s_lshl_b32 s5, s4, {(NSLOT*8).bit_length()-1}")
    E(f"  s_add_u32 s5, s5, {WS_ML_OFF}")
    assert NSLOT == 8
    E(f"  s_load_dwordx16 s[32:47], s[30:31], s5")
    E(f"  s_lshr_b32 s6, s4, 4")
    E(f"  s_lshl_b32 s7, s6, 2")
    E(f"  s_load_dword s48, s[24:25], s7")
    E(f"  s_mov_b32 s8, s30")
    E(f"  s_and_b32 s9, s31, 0xffff")
    E(f"  s_mov_b32 s10, {WS_BYTES}")
    E(f"  s_mov_b32 s11, 0x00020000")
    E(f"  s_lshl_b32 s12, s4, {10 + NSLOT.bit_length()-1}")
    E(f"  v_lshlrev_b32 v3, 4, v2")
    E(f"  s_add_u32 s13, s12, 4096")
    for s in range(NSLOT):
        E(f"  buffer_load_dwordx4 v[{8+4*s}:{11+4*s}], v3, s[8:11], s{12 + (s>>2)} offen offset:{(s&3)*1024}")
    E(f"  s_waitcnt lgkmcnt(0)")
    E(f"  v_mov_b32 v4, s32")
    for s in range(1, NSLOT):
        E(f"  v_max_f32 v4, s{32+2*s}, v4")
    E(f"  s_max_i32 s48, s48, 0")
    E(f"  s_min_i32 s48, s48, 2048")
    E(f"  s_sub_u32 s49, 2048, s48")
    E(f"  s_mov_b32 s50, 0")
    E(f"  s_cmp_eq_u32 s49, 0")
    E(f"  s_cbranch_scc1 L_cmb_fast")
    E(f"  v_cmp_gt_f32 vcc, {f2u(MASKRAW + 2048.0):#x}, v4")
    E(f"  s_nop 4")
    E(f"  s_cbranch_vccz L_cmb_fast")
    E(f"  s_mov_b32 s50, 1")
    E(f"  v_max_f32 v4, {f2u(MASKRAW):#x}, v4")
    E(f"L_cmb_fast:")
    E(f"  v_max_f32 v4, 0xff7fffff, v4")
    E(f"  v_mul_f32 v5, s52, v4")
    E(f"  v_mov_b32 v6, 0")
    for k in range(4):
        E(f"  v_mov_b32 v{40+k}, 0")
    E(f"  s_waitcnt vmcnt(0)")
    for s in range(NSLOT):
        E(f"  v_mov_b32 v7, s{32+2*s}")
        E(f"  v_fma_f32 v7, v7, s52, -v5")
        E(f"  v_exp_f32 v7, v7")
        E(f"  s_nop 0")
        E(f"  v_fma_f32 v6, v7, s{33+2*s}, v6")
        for k in range(4):
            E(f"  v_fma_f32 v{40+k}, v7, v{8+4*s+k}, v{40+k}")
    E(f"  s_cmp_eq_u32 s50, 0")
    E(f"  s_cbranch_scc1 L_cmb_out")
    E(f"  v_mov_b32 v7, {f2u(MASKRAW):#x}")
    E(f"  v_fma_f32 v7, v7, s52, -v5")
    E(f"  v_exp_f32 v7, v7")
    E(f"  v_cvt_f32_u32 v44, s49")
    E(f"  v_fma_f32 v6, v7, v44, v6")
    E(f"  s_mov_b32 s8, s20")
    E(f"  s_and_b32 s9, s21, 0xffff")
    E(f"  s_mov_b32 s10, {KV_BYTES}")
    E(f"  s_mov_b32 s11, 0x00020000")
    E(f"  s_and_b32 s13, s4, 15")
    E(f"  s_lshr_b32 s13, s13, 1")
    E(f"  s_lshl_b32 s13, s13, 9")
    E(f"  v_lshlrev_b32 v3, 3, v2")
    for k in range(4):
        E(f"  v_mov_b32 v{46+k}, 0")
    E(f"L_cmb_slow:")
    E(f"  s_lshr_b32 s14, s48, 4")
    E(f"  s_lshl_b32 s14, s14, 2")
    E(f"  s_lshl_b32 s15, s6, 9")
    E(f"  s_add_u32 s14, s14, s15")
    E(f"  s_load_dword s15, s[22:23], s14")
    E(f"  s_waitcnt lgkmcnt(0)")
    E(f"  s_lshl_b32 s15, s15, 16")
    E(f"  s_and_b32 s14, s48, 15")
    E(f"  s_lshl_b32 s14, s14, 12")
    E(f"  s_add_u32 s15, s15, s14")
    E(f"  s_add_u32 s15, s15, s13")
    E(f"  buffer_load_dwordx2 v[50:51], v3, s[8:11], s15 offen")
    E(f"  s_waitcnt vmcnt(0)")
    E(f"  v_lshlrev_b32 v52, 16, v50")
    E(f"  v_and_b32 v53, 0xffff0000, v50")
    E(f"  v_lshlrev_b32 v54, 16, v51")
    E(f"  v_and_b32 v55, 0xffff0000, v51")
    for k in range(4):
        E(f"  v_add_f32 v{46+k}, v{46+k}, v{52+k}")
    E(f"  s_add_u32 s48, s48, 1")
    E(f"  s_cmp_lt_u32 s48, 2048")
    E(f"  s_cbranch_scc1 L_cmb_slow")
    for k in range(4):
        E(f"  v_fma_f32 v{40+k}, v7, v{46+k}, v{40+k}")
    E(f"L_cmb_out:")
    E(f"  v_rcp_f32 v6, v6")
    E(f"  s_nop 0")
    for k in range(4):
        E(f"  v_mul_f32 v{40+k}, v{40+k}, v6")
    E(f"  v_cvt_pk_bf16_f32 v44, v40, v41")
    E(f"  v_cvt_pk_bf16_f32 v45, v42, v43")
    E(f"  s_mov_b32 s8, s26")
    E(f"  s_and_b32 s9, s27, 0xffff")
    E(f"  s_mov_b32 s10, {512*512}")
    E(f"  s_mov_b32 s11, 0x00020000")
    E(f"  s_lshl_b32 s12, s4, 9")
    E(f"  v_lshlrev_b32 v3, 3, v2")
    E(f"  buffer_store_dwordx2 v[44:45], v3, s[8:11], s12 offen")
    E(f"L_cmb_end:")
    E(f"  s_endpgm")

def kd(name, vgpr, sgpr):
    E(f".amdhsa_kernel {name}")
    E(f"  .amdhsa_next_free_vgpr {vgpr}")
    E(f"  .amdhsa_next_free_sgpr {sgpr}")
    E(f"  .amdhsa_accum_offset {(vgpr+3)//4*4}")
    E(f"  .amdhsa_group_segment_fixed_size 0")
    E(f"  .amdhsa_kernarg_size 64")
    E(f"  .amdhsa_user_sgpr_count 2")
    E(f"  .amdhsa_user_sgpr_kernarg_segment_ptr 1")
    E(f"  .amdhsa_system_sgpr_workgroup_id_x 1")
    E(f"  .amdhsa_float_denorm_mode_32 3")
    E(f".end_amdhsa_kernel")

hdr = open("cdna_kernels/" + NAME + ".s.ref").read().split("; Override launch")[0]
E(hdr.rstrip())
E(f"; @launch kernel={NAME}_kernel grid=({NWG},1,1) block=({NW*64},1,1) lds=1024")
E(f"; @launch kernel=combine_kernel grid=(128,1,1) block=(256,1,1) lds=0")
E('.amdgcn_target "amdgcn-amd-amdhsa--gfx950"')
E(".text")
main_kernel()
combine_kernel()
E('.section .rodata,"a"')
E(".p2align 6")
kd(f"{NAME}_kernel", V_END, S_END)
E(".p2align 6")
kd("combine_kernel", 56, 56)
open(sys.argv[1] if len(sys.argv) > 1 else "cdna_kernels/" + NAME + ".s", "w").write("\n".join(out) + "\n")
```

```python
import sys, os
STAMP = int(os.environ.get('STAMP', '0'))

NAME = "standalone__paged_block_table_kv_radixattention__sampling"
NW = 4
NSH = 128
SH_PARTS = 16
NPR = 256
NWG = NSH + NPR
NSLOT = 8
NUSED = 5
LDS_M = 1024
LDS_L = 2048
LDS_O = 4096
LDS_BYTES = LDS_O + NW * 16384
WS_O_BYTES = 512 * NSLOT * 1024
WS_ML_OFF = WS_O_BYTES
WS_BYTES = WS_O_BYTES + 512 * NSLOT * 8
KV_BYTES = 2112 * 65536
C_SCALE = 0.0625 * 1.4426950408889634

import struct
def f2u(f):
    return struct.unpack("<I", struct.pack("<f", f))[0]

out = []
def E(s=""):
    out.append(s)

V_TID, V_KOFF, V_VOFF, V_PHYS, V_J16, V_REM, V_M, V_L = 0, 1, 2, 3, 4, 5, 6, 7
V_T = 8
V_S = 16
V_P = 24
V_Q = 28
V_O = 60
V_K = 124
V_V = 188
V_END = 256 if STAMP else 252

S_KSRD, S_VSRD, S_XSRD = 4, 8, 12
S_ARG = 16
S_W, S_KVH, S_SH, S_BQ, S_KVHOFF = 32, 33, 34, 35, 36
S_NSTEP, S_IDX, S_JA, S_JB = 37, 38, 39, 40
S_OFFA, S_OFFB = 41, 42
S_VO = 44
S_C = 52
S_SELLO, S_SELHI = 53, 54
S_T0, S_T1, S_T2, S_T3 = 55, 56, 57, 58
S_MASK = 60
S_CTX8 = 76
S_NJA, S_NJB = 84, 85
S_N = 86
S_TK = 88
S_BASE = 92
S_PART, S_SLOT, S_LGP = 93, 94, 95
S_END = 102 if STAMP else 96

def kreg(tile, i):
    return V_K + tile * 32 + i * 4
def vreg(tile, e, hf):
    return V_V + ((tile * 4 + e) * 2 + hf) * 4
def oreg(hf, jj):
    return V_O + (hf * 8 + jj) * 4
def q4(r):
    return f"v[{r}:{r+3}]"

def emit_stamp():
    if not STAMP: return
    E(f"  s_memtime s[96:97]")
    E(f"  s_waitcnt lgkmcnt(0)")
    E(f"  s_mov_b32 m0, s98")
    E(f"  s_nop 0")
    E(f"  v_writelane_b32 v252, s96, m0")
    E(f"  s_add_u32 s98, s98, 1")
    E(f"  s_and_b32 s98, s98, 63")

def emit_next_offsets():
    E(f"  s_lshl_b32 s{S_T0}, s{S_IDX}, 1")
    E(f"  s_add_u32 s{S_T1}, s{S_T0}, 1")
    E(f"  v_readlane_b32 s{S_OFFA}, v{V_PHYS}, s{S_T0}")
    E(f"  v_readlane_b32 s{S_OFFB}, v{V_PHYS}, s{S_T1}")
    E(f"  v_readlane_b32 s{S_NJA}, v{V_J16}, s{S_T0}")
    E(f"  v_readlane_b32 s{S_NJB}, v{V_J16}, s{S_T1}")
    E(f"  s_nop 3")
    E(f"  s_lshl_b32 s{S_OFFA}, s{S_OFFA}, 16")
    E(f"  s_lshl_b32 s{S_OFFB}, s{S_OFFB}, 16")
    E(f"  s_add_u32 s{S_OFFA}, s{S_OFFA}, s{S_KVHOFF}")
    E(f"  s_add_u32 s{S_OFFB}, s{S_OFFB}, s{S_KVHOFF}")
    for t, so in ((0, S_OFFA), (1, S_OFFB)):
        for e in range(4):
            if e == 0:
                E(f"  s_mov_b32 s{S_VO + t*4}, s{so}")
            else:
                E(f"  s_add_u32 s{S_VO + t*4 + e}, s{so}, {e*4096}")

def emit_k_loads(nt):
    for t, so in ((0, S_OFFA), (1, S_OFFB)):
        for i in range(8):
            E(f"  buffer_load_dwordx4 {q4(kreg(t,i))}, v{V_KOFF}, s[{S_KSRD}:{S_KSRD+3}], s{so} offen offset:{i*64}{nt}")

def emit_v_loads(nt):
    for t in range(2):
        for e in range(4):
            for hf in range(2):
                E(f"  buffer_load_dwordx4 {q4(vreg(t,e,hf))}, v{V_VOFF}, s[{S_VSRD}:{S_VSRD+3}], s{S_VO+t*4+e} offen offset:{hf*256}{nt}")

def emit_xreduce(reg, tmp, op):
    E(f"  v_mov_b32 v{tmp}, v{reg}")
    E(f"  s_nop 1")
    E(f"  v_permlane32_swap_b32 v{reg}, v{tmp}")
    E(f"  s_nop 1")
    E(f"  {op} v{reg}, v{reg}, v{tmp}")
    E(f"  v_mov_b32 v{tmp}, v{reg}")
    E(f"  s_nop 1")
    E(f"  v_permlane16_swap_b32 v{reg}, v{tmp}")
    E(f"  s_nop 1")
    E(f"  {op} v{reg}, v{reg}, v{tmp}")

def emit_step(has_next, nt, tag):
    SA, SB = V_S, V_S + 4
    E(f"  s_waitcnt vmcnt(16)")
    emit_stamp()
    for i in range(8):
        for t, sr in ((0, SA), (1, SB)):
            c = "0" if i == 0 else q4(sr)
            E(f"  v_mfma_f32_16x16x32_bf16 {q4(sr)}, {q4(kreg(t,i))}, {q4(V_Q+4*i)}, {c}")
    if has_next:
        E(f"  s_add_u32 s{S_IDX}, s{S_IDX}, 1")
        emit_next_offsets()
        emit_k_loads(nt)
    E(f"  v_subrev_u32 v{V_T}, s{S_JA}, v{V_REM}")
    E(f"  v_subrev_u32 v{V_T+1}, s{S_JB}, v{V_REM}")
    for r in range(4):
        E(f"  v_cmp_gt_i32 s[{S_MASK+2*r}:{S_MASK+2*r+1}], v{V_T}, {r}")
    for r in range(4):
        E(f"  v_cmp_gt_i32 s[{S_MASK+8+2*r}:{S_MASK+8+2*r+1}], v{V_T+1}, {r}")
    E(f"  v_mov_b32 v{V_T+2}, 0xff800000")
    E(f"  s_nop 7")
    for r in range(8):
        E(f"  v_cndmask_b32 v{V_S+r}, v{V_T+2}, v{V_S+r}, s[{S_MASK+2*r}:{S_MASK+2*r+1}]")
    E(f"  v_max3_f32 v{V_T}, v{V_S}, v{V_S+1}, v{V_S+2}")
    E(f"  v_max3_f32 v{V_T+1}, v{V_S+3}, v{V_S+4}, v{V_S+5}")
    E(f"  v_max3_f32 v{V_T}, v{V_S+6}, v{V_S+7}, v{V_T}")
    E(f"  v_max_f32 v{V_T}, v{V_T}, v{V_T+1}")
    emit_xreduce(V_T, V_T+1, "v_max_f32")
    E(f"  v_max_f32 v{V_T}, v{V_M}, v{V_T}")
    E(f"  v_max_f32 v{V_T+1}, 0xff7fffff, v{V_T}")
    E(f"  v_mul_f32 v{V_T+1}, s{S_C}, v{V_T+1}")
    E(f"  v_fma_f32 v{V_T+2}, v{V_M}, s{S_C}, -v{V_T+1}")
    E(f"  v_exp_f32 v{V_T+2}, v{V_T+2}")
    E(f"  v_mov_b32 v{V_M}, v{V_T}")
    for r in range(8):
        E(f"  v_fma_f32 v{V_S+r}, v{V_S+r}, s{S_C}, -v{V_T+1}")
    for r in range(8):
        E(f"  v_exp_f32 v{V_S+r}, v{V_S+r}")
    E(f"  v_cmp_neq_f32 vcc, 1.0, v{V_T+2}")
    E(f"  v_mul_f32 v{V_L}, v{V_L}, v{V_T+2}")
    E(f"  v_add_f32 v{V_T+3}, v{V_S}, v{V_S+1}")
    E(f"  v_add_f32 v{V_T+4}, v{V_S+2}, v{V_S+3}")
    E(f"  v_add_f32 v{V_T+5}, v{V_S+4}, v{V_S+5}")
    E(f"  v_add_f32 v{V_T+6}, v{V_S+6}, v{V_S+7}")
    E(f"  v_add_f32 v{V_T+3}, v{V_T+3}, v{V_T+4}")
    E(f"  v_add_f32 v{V_T+5}, v{V_T+5}, v{V_T+6}")
    E(f"  v_add_f32 v{V_T+3}, v{V_T+3}, v{V_T+5}")
    E(f"  v_add_f32 v{V_L}, v{V_L}, v{V_T+3}")
    for k in range(4):
        E(f"  v_cvt_pk_bf16_f32 v{V_P+k}, v{V_S+2*k}, v{V_S+2*k+1}")
    E(f"  s_cbranch_vccz L_noscale_{tag}")
    for r in range(64):
        E(f"  v_mul_f32 v{V_O+r}, v{V_O+r}, v{V_T+2}")
    E(f"L_noscale_{tag}:")
    if has_next:
        E(f"  s_waitcnt vmcnt(16)")
    else:
        E(f"  s_waitcnt vmcnt(0)")
    emit_stamp()
    n = 0
    for hf in range(2):
        for jj in range(8):
            tq = V_T + (n & 1) * 4
            sel = S_SELHI if (jj & 1) else S_SELLO
            w = jj >> 1
            for t in range(2):
                for pp in range(2):
                    lo = vreg(t, 2*pp, hf) + w
                    hi = vreg(t, 2*pp+1, hf) + w
                    E(f"  v_perm_b32 v{tq + t*2 + pp}, v{hi}, v{lo}, s{sel}")
            E(f"  s_nop 1")
            E(f"  v_mfma_f32_16x16x32_bf16 {q4(oreg(hf,jj))}, {q4(tq)}, {q4(V_P)}, {q4(oreg(hf,jj))}")
            n += 1
    if has_next:
        emit_v_loads(nt)
        E(f"  s_mov_b32 s{S_JA}, s{S_NJA}")
        E(f"  s_mov_b32 s{S_JB}, s{S_NJB}")

def main_kernel():
    E(f".globl {NAME}_kernel")
    E(f".p2align 8")
    E(f".type {NAME}_kernel,@function")
    E(f"{NAME}_kernel:")
    E(f"  s_cmp_ge_u32 s2, {NWG}")
    E(f"  s_cbranch_scc1 L_main_end")
    if STAMP:
        E(f"  s_mov_b32 s98, 0")
        E(f"  v_mov_b32 v252, 0")
    emit_stamp()
    E(f"  s_load_dwordx16 s[{S_ARG}:{S_ARG+15}], s[0:1], 0")
    VL, VCOL, VG, VBL = 8, 9, 10, 11
    E(f"  v_and_b32 v{VL}, 63, v0")
    E(f"  v_lshrrev_b32 v12, 6, v0")
    E(f"  v_and_b32 v{VCOL}, 15, v0")
    E(f"  v_readfirstlane_b32 s{S_W}, v12")
    E(f"  v_lshrrev_b32 v{VG}, 4, v{VL}")
    E(f"  s_nop 3")
    E(f"  s_and_b32 s{S_KVH}, s2, 7")
    E(f"  s_lshl_b32 s{S_KVHOFF}, s{S_KVH}, 9")
    E(f"  s_lshr_b32 s{S_BQ}, s2, 3")
    E(f"  s_mov_b32 s{S_C}, {f2u(C_SCALE):#x}")
    E(f"  s_mov_b32 s{S_SELLO}, 0x05040100")
    E(f"  s_mov_b32 s{S_SELHI}, 0x07060302")
    E(f"  s_cmp_ge_u32 s2, {NPR}")
    E(f"  s_cselect_b32 s{S_SH}, 1, 0")
    E(f"  s_cbranch_scc1 L_pro_shared")
    E(f"  v_mov_b32 v{VBL}, s{S_BQ}")
    E(f"  s_lshl_b32 s{S_T0}, s{S_BQ}, 2")
    E(f"  s_lshl_b32 s{S_T1}, s{S_BQ}, 9")
    E(f"  s_mov_b32 s{S_PART}, s{S_W}")
    E(f"  s_mov_b32 s{S_SLOT}, 0")
    E(f"  s_mov_b32 s{S_LGP}, {NW.bit_length()-1}")
    E(f"  s_waitcnt lgkmcnt(0)")
    E(f"  s_load_dword s{S_CTX8}, s[24:25], s{S_T0}")
    E(f"  s_branch L_pro_common")
    E(f"L_pro_shared:")
    E(f"  s_sub_u32 s{S_BQ}, s{S_BQ}, {NPR//8}")
    E(f"  s_lshr_b32 s{S_SLOT}, s{S_BQ}, 2")
    E(f"  s_and_b32 s{S_BQ}, s{S_BQ}, 3")
    E(f"  s_lshl_b32 s{S_PART}, s{S_SLOT}, 2")
    E(f"  s_add_u32 s{S_PART}, s{S_PART}, s{S_W}")
    E(f"  s_add_u32 s{S_SLOT}, s{S_SLOT}, 1")
    E(f"  s_mov_b32 s{S_LGP}, {SH_PARTS.bit_length()-1}")
    E(f"  v_lshrrev_b32 v{VBL}, 1, v{VCOL}")
    E(f"  s_lshl_b32 s{S_T0}, s{S_BQ}, 3")
    E(f"  v_add_u32 v{VBL}, s{S_T0}, v{VBL}")
    E(f"  s_lshl_b32 s{S_T0}, s{S_BQ}, 5")
    E(f"  s_mov_b32 s{S_T1}, 0")
    E(f"  s_waitcnt lgkmcnt(0)")
    E(f"  s_load_dwordx8 s[{S_CTX8}:{S_CTX8+7}], s[24:25], s{S_T0}")
    E(f"L_pro_common:")
    E(f"  s_mov_b32 s{S_KSRD}, s18")
    E(f"  s_and_b32 s{S_KSRD+1}, s19, 0xffff")
    E(f"  s_mov_b32 s{S_KSRD+2}, {KV_BYTES}")
    E(f"  s_mov_b32 s{S_KSRD+3}, 0x00020000")
    E(f"  s_mov_b32 s{S_VSRD}, s20")
    E(f"  s_and_b32 s{S_VSRD+1}, s21, 0xffff")
    E(f"  s_mov_b32 s{S_VSRD+2}, {KV_BYTES}")
    E(f"  s_mov_b32 s{S_VSRD+3}, 0x00020000")
    E(f"  s_mov_b32 s{S_XSRD}, s22")
    E(f"  s_and_b32 s{S_XSRD+1}, s23, 0xffff")
    E(f"  s_mov_b32 s{S_XSRD+2}, 16384")
    E(f"  s_mov_b32 s{S_XSRD+3}, 0x00020000")
    E(f"  v_and_b32 v12, 31, v{VL}")
    E(f"  v_lshlrev_b32 v12, 4, v12")
    E(f"  v_lshrrev_b32 v13, 5, v{VL}")
    E(f"  v_lshl_add_u32 v13, v13, 9, v12")
    TB = V_K
    R0 = V_K + 64
    OWN = V_K + 68
    E(f"  s_mov_b32 s{S_T2}, 4096")
    E(f"  s_mov_b32 s{S_T3}, 8192")
    E(f"  s_mov_b32 s{S_BASE}, 12288")
    so = ["0", f"s{S_T2}", f"s{S_T3}", f"s{S_BASE}"]
    E(f"  buffer_load_dwordx4 {q4(R0)}, v12, s[{S_XSRD}:{S_XSRD+3}], 0 offen")
    E(f"  buffer_load_dwordx4 {q4(OWN)}, v12, s[{S_XSRD}:{S_XSRD+3}], s{S_T1} offen")
    for i in range(16):
        E(f"  buffer_load_dwordx4 {q4(TB+4*i)}, v13, s[{S_XSRD}:{S_XSRD+3}], {so[i>>2]} offen offset:{(i&3)*1024}")
    E(f"  v_lshlrev_b32 v14, 2, v{VBL}")
    E(f"  global_load_dword v{V_REM}, v14, s[24:25]")
    E(f"  v_and_b32 v14, 1, v{VCOL}")
    E(f"  v_lshl_add_u32 v14, v{VBL}, 4, v14")
    E(f"  s_lshl_b32 s{S_T0}, s{S_KVH}, 1")
    E(f"  v_add_u32 v14, s{S_T0}, v14")
    E(f"  v_lshlrev_b32 v15, 9, v14")
    E(f"  v_lshl_add_u32 v15, v{VG}, 4, v15")
    for i in range(8):
        E(f"  global_load_dwordx4 {q4(V_Q+4*i)}, v15, s[16:17] offset:{i*64}")
    E(f"  v_lshlrev_b32 v{V_KOFF}, 12, v{VCOL}")
    E(f"  v_lshl_add_u32 v{V_KOFF}, v{VG}, 4, v{V_KOFF}")
    E(f"  v_lshlrev_b32 v{V_VOFF}, 14, v{VG}")
    E(f"  v_lshl_add_u32 v{V_VOFF}, v{VCOL}, 4, v{V_VOFF}")
    E(f"  s_waitcnt lgkmcnt(0)")
    E(f"  s_cmp_eq_u32 s{S_SH}, 0")
    E(f"  s_cbranch_scc1 L_pro_nomax")
    for k in range(1, 8):
        E(f"  s_max_i32 s{S_CTX8}, s{S_CTX8}, s{S_CTX8+k}")
    E(f"L_pro_nomax:")
    E(f"  s_max_i32 s{S_CTX8}, s{S_CTX8}, 0")
    E(f"  s_min_i32 s{S_CTX8}, s{S_CTX8}, 2048")
    E(f"  s_add_u32 s{S_CTX8}, s{S_CTX8}, 15")
    E(f"  s_lshr_b32 s{S_CTX8}, s{S_CTX8}, 4")
    E(f"  v_mov_b32 v{V_M}, 0xff800000")
    E(f"  v_mov_b32 v{V_L}, 0")
    for r in range(64):
        E(f"  v_mov_b32 v{V_O+r}, 0")
    E(f"  s_waitcnt vmcnt(9)")
    for c in range(4):
        E(f"  v_xor_b32 v{12+c}, v{TB+c}, v{R0+c}")
        for i in range(1, 16):
            E(f"  v_xor_b32 v{TB+4*i+c}, v{TB+4*i+c}, v{R0+c}")
        for i in range(1, 16, 2):
            if i + 1 < 16:
                E(f"  v_or3_b32 v{12+c}, v{12+c}, v{TB+4*i+c}, v{TB+4*(i+1)+c}")
            else:
                E(f"  v_or_b32 v{12+c}, v{12+c}, v{TB+4*i+c}")
    E(f"  v_and_b32 v{TB}, 31, v{VL}")
    E(f"  v_lshlrev_b32 v{TB}, 2, v{TB}")
    for c in range(4):
        E(f"  v_cmp_ne_u32 s[{S_MASK+2*c}:{S_MASK+2*c+1}], 0, v{12+c}")
    for c in range(4):
        E(f"  v_add_u32 v{TB+1+c}, {c}, v{TB}")
        E(f"  v_cmp_gt_u32 s[{S_MASK+8+2*c}:{S_MASK+8+2*c+1}], s{S_CTX8}, v{TB+1+c}")
    E(f"  s_nop 3")
    E(f"  s_cmp_eq_u32 s{S_SH}, 1")
    E(f"  s_cselect_b32 s{S_T0}, -1, 0")
    for c in range(4):
        E(f"  s_or_b32 s{S_TK+c}, s{S_MASK+2*c}, s{S_MASK+2*c+1}")
        E(f"  s_xor_b32 s{S_TK+c}, s{S_TK+c}, s{S_T0}")
        E(f"  s_and_b32 s{S_TK+c}, s{S_TK+c}, s{S_MASK+8+2*c}")
    E(f"  s_mov_b32 s{S_N}, 0")
    for c in range(4):
        E(f"  v_mbcnt_lo_u32_b32 v12, s{S_TK+c}, 0")
        E(f"  v_add_u32 v12, s{S_N}, v12")
        E(f"  v_lshlrev_b32 v12, 3, v12")
        E(f"  v_mov_b32 v14, v{OWN+c}")
        E(f"  v_lshlrev_b32 v15, 4, v{TB+1+c}")
        E(f"  s_mov_b32 exec_lo, s{S_TK+c}")
        E(f"  s_mov_b32 exec_hi, 0")
        E(f"  ds_write_b64 v12, v[14:15]")
        E(f"  s_mov_b64 exec, -1")
        E(f"  s_bcnt1_i32_b32 s{S_T0}, s{S_TK+c}")
        E(f"  s_add_u32 s{S_N}, s{S_N}, s{S_T0}")
    E(f"  s_add_u32 s{S_T0}, s{S_N}, 1")
    E(f"  s_lshr_b32 s{S_T0}, s{S_T0}, 1")
    E(f"  s_lshr_b32 s{S_T1}, s{S_T0}, s{S_LGP}")
    E(f"  s_lshl_b32 s{S_T2}, s{S_T1}, s{S_LGP}")
    E(f"  s_sub_u32 s{S_T2}, s{S_T0}, s{S_T2}")
    E(f"  s_mul_i32 s{S_T3}, s{S_PART}, s{S_T1}")
    E(f"  s_min_u32 s{S_BASE}, s{S_PART}, s{S_T2}")
    E(f"  s_add_u32 s{S_T3}, s{S_T3}, s{S_BASE}")
    E(f"  s_cmp_lt_u32 s{S_PART}, s{S_T2}")
    E(f"  s_cselect_b32 s{S_BASE}, 1, 0")
    E(f"  s_add_u32 s{S_NSTEP}, s{S_T1}, s{S_BASE}")
    E(f"  s_lshl_b32 s{S_T3}, s{S_T3}, 1")
    E(f"  v_add_u32 v12, s{S_T3}, v{VL}")
    E(f"  v_lshlrev_b32 v13, 3, v12")
    E(f"  v_and_b32 v13, 0x3ff, v13")
    E(f"  s_waitcnt lgkmcnt(0)")
    E(f"  ds_read_b64 v[14:15], v13")
    E(f"  v_cmp_gt_u32 vcc, s{S_N}, v12")
    E(f"  v_mov_b32 v13, 0x100000")
    E(f"  s_waitcnt lgkmcnt(0)")
    E(f"  v_cndmask_b32 v{V_PHYS}, 0, v14, vcc")
    E(f"  v_cndmask_b32 v{V_J16}, v13, v15, vcc")
    E(f"  s_waitcnt vmcnt(0)")
    E(f"  v_lshlrev_b32 v12, 2, v{VG}")
    E(f"  v_max_i32 v{V_REM}, 0, v{V_REM}")
    E(f"  v_min_i32 v{V_REM}, 2048, v{V_REM}")
    E(f"  v_sub_u32 v{V_REM}, v{V_REM}, v12")
    emit_stamp()
    E(f"  s_cmp_eq_u32 s{S_NSTEP}, 0")
    E(f"  s_cbranch_scc1 L_epilogue")
    E(f"  s_mov_b32 s{S_IDX}, 0")
    E(f"  s_cmp_eq_u32 s{S_SH}, 1")
    E(f"  s_cbranch_scc1 L_path_sh")
    for tag, nt in (("pr", " nt"), ("sh", "")):
        E(f"L_path_{tag}:")
        emit_next_offsets()
        emit_k_loads(nt)
        emit_v_loads(nt)
        E(f"  s_mov_b32 s{S_JA}, s{S_NJA}")
        E(f"  s_mov_b32 s{S_JB}, s{S_NJB}")
        E(f"  s_sub_u32 s{S_NSTEP}, s{S_NSTEP}, 1")
        E(f"  s_cmp_eq_u32 s{S_NSTEP}, 0")
        E(f"  s_cbranch_scc1 L_last_{tag}")
        E(f"L_loop_{tag}:")
        emit_step(True, nt, f"{tag}_a")
        E(f"  s_sub_u32 s{S_NSTEP}, s{S_NSTEP}, 1")
        E(f"  s_cmp_lg_u32 s{S_NSTEP}, 0")
        E(f"  s_cbranch_scc1 L_loop_{tag}")
        E(f"L_last_{tag}:")
        emit_step(False, nt, f"{tag}_b")
        if tag == "pr":
            E(f"  s_branch L_epilogue")
    E(f"L_epilogue:")
    E(f"  s_nop 15")
    emit_xreduce(V_L, V_T, "v_add_f32")
    E(f"  v_and_b32 v{VL}, 63, v0")
    E(f"  v_and_b32 v{VCOL}, 15, v0")
    E(f"  v_lshrrev_b32 v{VG}, 4, v{VL}")
    E(f"  v_lshlrev_b32 v12, 2, v0")
    E(f"  v_lshlrev_b32 v13, 2, v{VL}")
    E(f"  ds_write_b32 v12, v{V_M} offset:{LDS_M}")
    E(f"  s_waitcnt lgkmcnt(0)")
    E(f"  s_barrier")
    for w in range(NW):
        E(f"  ds_read_b32 v{V_S+w}, v13 offset:{LDS_M + w*256}")
    E(f"  s_waitcnt lgkmcnt(0)")
    E(f"  v_max3_f32 v14, v{V_S}, v{V_S+1}, v{V_S+2}")
    E(f"  v_max_f32 v14, v14, v{V_S+3}")
    E(f"  v_max_f32 v15, 0xff7fffff, v14")
    E(f"  v_mul_f32 v15, s{S_C}, v15")
    E(f"  v_fma_f32 v15, v{V_M}, s{S_C}, -v15")
    E(f"  v_exp_f32 v15, v15")
    E(f"  s_nop 0")
    E(f"  v_mul_f32 v{V_L}, v{V_L}, v15")
    for r in range(64):
        E(f"  v_mul_f32 v{V_O+r}, v{V_O+r}, v15")
    E(f"  ds_write_b32 v12, v{V_L} offset:{LDS_L}")
    E(f"  s_lshl_b32 s{S_T0}, s{S_W}, 14")
    E(f"  v_lshlrev_b32 v12, 4, v{VL}")
    E(f"  v_add_u32 v15, s{S_T0}, v12")
    for qd in range(16):
        E(f"  ds_write_b128 v15, {q4(V_O+4*qd)} offset:{LDS_O + qd*1024}")
    E(f"  s_waitcnt lgkmcnt(0)")
    E(f"  s_barrier")
    E(f"  s_lshl_b32 s{S_T0}, s{S_W}, 12")
    E(f"  v_add_u32 v15, s{S_T0}, v12")
    for w in range(NW):
        for k in range(4):
            E(f"  ds_read_b128 {q4(V_K + (w*4+k)*4)}, v15 offset:{LDS_O + w*16384 + k*1024}")
    for w in range(NW):
        E(f"  ds_read_b32 v{V_S+w}, v13 offset:{LDS_L + w*256}")
    E(f"  s_cmp_eq_u32 s{S_SH}, 1")
    E(f"  s_cbranch_scc1 L_epi_sh")
    E(f"  v_mov_b32 v{VBL}, s{S_BQ}")
    E(f"  v_cmp_gt_u32 vcc, 2, v{VCOL}")
    E(f"  s_branch L_epi_common")
    E(f"L_epi_sh:")
    E(f"  v_lshrrev_b32 v{VBL}, 1, v{VCOL}")
    E(f"  s_lshl_b32 s{S_T0}, s{S_BQ}, 3")
    E(f"  v_add_u32 v{VBL}, s{S_T0}, v{VBL}")
    E(f"  s_mov_b64 vcc, -1")
    E(f"L_epi_common:")
    E(f"  v_and_b32 v12, 1, v{VCOL}")
    E(f"  v_lshl_add_u32 v12, v{VBL}, 4, v12")
    E(f"  s_lshl_b32 s{S_T0}, s{S_KVH}, 1")
    E(f"  v_add_u32 v12, s{S_T0}, v12")
    lgs = NSLOT.bit_length() - 1
    E(f"  v_lshlrev_b32 v12, {lgs}, v12")
    E(f"  v_add_u32 v12, s{S_SLOT}, v12")
    E(f"  v_lshlrev_b32 v15, 10, v12")
    E(f"  v_lshl_add_u32 v15, v{VG}, 7, v15")
    E(f"  s_lshr_b32 s{S_T0}, s{S_W}, 1")
    E(f"  s_lshl_b32 s{S_T0}, s{S_T0}, 9")
    E(f"  s_and_b32 s{S_T1}, s{S_W}, 1")
    E(f"  s_lshl_b32 s{S_T1}, s{S_T1}, 4")
    E(f"  s_add_u32 s{S_T0}, s{S_T0}, s{S_T1}")
    E(f"  v_add_u32 v15, s{S_T0}, v15")
    E(f"  v_lshlrev_b32 v12, 3, v12")
    E(f"  v_add_u32 v12, {WS_ML_OFF}, v12")
    E(f"  s_mov_b32 s{S_XSRD}, s30")
    E(f"  s_and_b32 s{S_XSRD+1}, s31, 0xffff")
    E(f"  s_mov_b32 s{S_XSRD+2}, {WS_BYTES}")
    E(f"  s_mov_b32 s{S_XSRD+3}, 0x00020000")
    E(f"  s_waitcnt lgkmcnt(0)")
    for k in range(4):
        for r in range(4):
            a0 = V_K + (0*4+k)*4 + r; a1 = V_K + (1*4+k)*4 + r; a2 = V_K + (2*4+k)*4 + r; a3 = V_K + (3*4+k)*4 + r
            E(f"  v_add_f32 v{a0}, v{a0}, v{a1}")
            E(f"  v_add_f32 v{a2}, v{a2}, v{a3}")
            E(f"  v_add_f32 v{V_V + r*4 + k}, v{a0}, v{a2}")
    E(f"  v_add_f32 v{V_S}, v{V_S}, v{V_S+1}")
    E(f"  v_add_f32 v{V_S+2}, v{V_S+2}, v{V_S+3}")
    E(f"  v_add_f32 v{V_S+1}, v{V_S}, v{V_S+2}")
    E(f"  v_mov_b32 v{V_S}, v14")
    E(f"  s_mov_b64 exec, vcc")
    for r in range(4):
        E(f"  buffer_store_dwordx4 {q4(V_V + r*4)}, v15, s[{S_XSRD}:{S_XSRD+3}], 0 offen offset:{r*32}")
    E(f"  s_cmp_lg_u32 s{S_W}, 0")
    E(f"  s_cbranch_scc1 L_epi_done")
    E(f"  v_cmp_eq_u32 vcc, 0, v{VG}")
    E(f"  s_and_b64 exec, exec, vcc")
    E(f"  buffer_store_dwordx2 v[{V_S}:{V_S+1}], v12, s[{S_XSRD}:{S_XSRD+3}], 0 offen")
    E(f"L_epi_done:")
    if STAMP:
        emit_stamp()
        E(f"  s_mov_b64 exec, -1")
        E(f"  s_lshl_b32 s99, s2, 2")
        E(f"  s_add_u32 s99, s99, s{S_W}")
        E(f"  s_lshl_b32 s99, s99, 8")
        E(f"  s_add_u32 s99, s99, 0x800000")
        E(f"  v_and_b32 v253, 63, v0")
        E(f"  v_lshlrev_b32 v253, 2, v253")
        E(f"  v_add_u32 v253, s99, v253")
        E(f"  global_store_dword v253, v252, s[30:31]")
    E(f"L_main_end:")
    E(f"  s_endpgm")

def combine_kernel():
    MASKRAW = -998244352.0 * 16.0
    E(f".globl combine_kernel")
    E(f".p2align 8")
    E(f".type combine_kernel,@function")
    E(f"combine_kernel:")
    E(f"  s_cmp_ge_u32 s2, 128")
    E(f"  s_cbranch_scc1 L_cmb_end")
    E(f"  s_load_dwordx16 s[16:31], s[0:1], 0")
    E(f"  v_lshrrev_b32 v1, 6, v0")
    E(f"  v_and_b32 v2, 63, v0")
    E(f"  s_nop 0")
    E(f"  v_readfirstlane_b32 s3, v1")
    E(f"  s_lshl_b32 s4, s2, 2")
    E(f"  s_nop 2")
    E(f"  s_add_u32 s4, s4, s3")
    E(f"  s_mov_b32 s52, {f2u(C_SCALE):#x}")
    E(f"  s_waitcnt lgkmcnt(0)")
    E(f"  s_lshl_b32 s5, s4, {(NSLOT*8).bit_length()-1}")
    E(f"  s_add_u32 s5, s5, {WS_ML_OFF}")
    assert NSLOT == 8
    E(f"  s_load_dwordx16 s[32:47], s[30:31], s5")
    E(f"  s_lshr_b32 s6, s4, 4")
    E(f"  s_lshl_b32 s7, s6, 2")
    E(f"  s_load_dword s48, s[24:25], s7")
    E(f"  s_mov_b32 s8, s30")
    E(f"  s_and_b32 s9, s31, 0xffff")
    E(f"  s_mov_b32 s10, {WS_BYTES}")
    E(f"  s_mov_b32 s11, 0x00020000")
    E(f"  s_lshl_b32 s12, s4, {10 + NSLOT.bit_length()-1}")
    E(f"  v_lshlrev_b32 v3, 4, v2")
    E(f"  s_add_u32 s13, s12, 4096")
    for s in range(NUSED):
        E(f"  buffer_load_dwordx4 v[{8+4*s}:{11+4*s}], v3, s[8:11], s{12 + (s>>2)} offen offset:{(s&3)*1024}")
    E(f"  s_waitcnt lgkmcnt(0)")
    E(f"  v_mov_b32 v4, s32")
    for s in range(1, NUSED):
        E(f"  v_max_f32 v4, s{32+2*s}, v4")
    E(f"  s_max_i32 s48, s48, 0")
    E(f"  s_min_i32 s48, s48, 2048")
    E(f"  s_sub_u32 s49, 2048, s48")
    E(f"  s_mov_b32 s50, 0")
    E(f"  s_cmp_eq_u32 s49, 0")
    E(f"  s_cbranch_scc1 L_cmb_fast")
    E(f"  v_cmp_gt_f32 vcc, {f2u(MASKRAW + 2048.0):#x}, v4")
    E(f"  s_nop 4")
    E(f"  s_cbranch_vccz L_cmb_fast")
    E(f"  s_mov_b32 s50, 1")
    E(f"  v_max_f32 v4, {f2u(MASKRAW):#x}, v4")
    E(f"L_cmb_fast:")
    E(f"  v_max_f32 v4, 0xff7fffff, v4")
    E(f"  v_mul_f32 v5, s52, v4")
    E(f"  v_mov_b32 v6, 0")
    for k in range(4):
        E(f"  v_mov_b32 v{40+k}, 0")
    E(f"  s_waitcnt vmcnt(0)")
    for s in range(NUSED):
        E(f"  v_mov_b32 v7, s{32+2*s}")
        E(f"  v_fma_f32 v7, v7, s52, -v5")
        E(f"  v_exp_f32 v7, v7")
        E(f"  s_nop 0")
        E(f"  v_fma_f32 v6, v7, s{33+2*s}, v6")
        for k in range(4):
            E(f"  v_fma_f32 v{40+k}, v7, v{8+4*s+k}, v{40+k}")
    E(f"  s_cmp_eq_u32 s50, 0")
    E(f"  s_cbranch_scc1 L_cmb_out")
    E(f"  v_mov_b32 v7, {f2u(MASKRAW):#x}")
    E(f"  v_fma_f32 v7, v7, s52, -v5")
    E(f"  v_exp_f32 v7, v7")
    E(f"  v_cvt_f32_u32 v44, s49")
    E(f"  v_fma_f32 v6, v7, v44, v6")
    E(f"  s_mov_b32 s8, s20")
    E(f"  s_and_b32 s9, s21, 0xffff")
    E(f"  s_mov_b32 s10, {KV_BYTES}")
    E(f"  s_mov_b32 s11, 0x00020000")
    E(f"  s_and_b32 s13, s4, 15")
    E(f"  s_lshr_b32 s13, s13, 1")
    E(f"  s_lshl_b32 s13, s13, 9")
    E(f"  v_lshlrev_b32 v3, 3, v2")
    for k in range(4):
        E(f"  v_mov_b32 v{46+k}, 0")
    E(f"L_cmb_slow:")
    E(f"  s_lshr_b32 s14, s48, 4")
    E(f"  s_lshl_b32 s14, s14, 2")
    E(f"  s_lshl_b32 s15, s6, 9")
    E(f"  s_add_u32 s14, s14, s15")
    E(f"  s_load_dword s15, s[22:23], s14")
    E(f"  s_waitcnt lgkmcnt(0)")
    E(f"  s_lshl_b32 s15, s15, 16")
    E(f"  s_and_b32 s14, s48, 15")
    E(f"  s_lshl_b32 s14, s14, 12")
    E(f"  s_add_u32 s15, s15, s14")
    E(f"  s_add_u32 s15, s15, s13")
    E(f"  buffer_load_dwordx2 v[50:51], v3, s[8:11], s15 offen")
    E(f"  s_waitcnt vmcnt(0)")
    E(f"  v_lshlrev_b32 v52, 16, v50")
    E(f"  v_and_b32 v53, 0xffff0000, v50")
    E(f"  v_lshlrev_b32 v54, 16, v51")
    E(f"  v_and_b32 v55, 0xffff0000, v51")
    for k in range(4):
        E(f"  v_add_f32 v{46+k}, v{46+k}, v{52+k}")
    E(f"  s_add_u32 s48, s48, 1")
    E(f"  s_cmp_lt_u32 s48, 2048")
    E(f"  s_cbranch_scc1 L_cmb_slow")
    for k in range(4):
        E(f"  v_fma_f32 v{40+k}, v7, v{46+k}, v{40+k}")
    E(f"L_cmb_out:")
    E(f"  v_rcp_f32 v6, v6")
    E(f"  s_nop 0")
    for k in range(4):
        E(f"  v_mul_f32 v{40+k}, v{40+k}, v6")
    E(f"  v_cvt_pk_bf16_f32 v44, v40, v41")
    E(f"  v_cvt_pk_bf16_f32 v45, v42, v43")
    E(f"  s_mov_b32 s8, s26")
    E(f"  s_and_b32 s9, s27, 0xffff")
    E(f"  s_mov_b32 s10, {512*512}")
    E(f"  s_mov_b32 s11, 0x00020000")
    E(f"  s_lshl_b32 s12, s4, 9")
    E(f"  v_lshlrev_b32 v3, 3, v2")
    E(f"  buffer_store_dwordx2 v[44:45], v3, s[8:11], s12 offen")
    E(f"L_cmb_end:")
    E(f"  s_endpgm")

def kd(name, vgpr, sgpr):
    E(f".amdhsa_kernel {name}")
    E(f"  .amdhsa_next_free_vgpr {vgpr}")
    E(f"  .amdhsa_next_free_sgpr {sgpr}")
    E(f"  .amdhsa_accum_offset {(vgpr+3)//4*4}")
    E(f"  .amdhsa_group_segment_fixed_size 0")
    E(f"  .amdhsa_kernarg_size 64")
    E(f"  .amdhsa_user_sgpr_count 2")
    E(f"  .amdhsa_user_sgpr_kernarg_segment_ptr 1")
    E(f"  .amdhsa_system_sgpr_workgroup_id_x 1")
    E(f"  .amdhsa_float_denorm_mode_32 3")
    E(f".end_amdhsa_kernel")

hdr = open("cdna_kernels/" + NAME + ".s.ref").read().split("; Override launch")[0]
E(hdr.rstrip())
E(f"; @launch kernel={NAME}_kernel grid=({NWG},1,1) block=({NW*64},1,1) lds={LDS_BYTES}")
E(f"; @launch kernel=combine_kernel grid=(128,1,1) block=(256,1,1) lds=0")
E('.amdgcn_target "amdgcn-amd-amdhsa--gfx950"')
E(".text")
main_kernel()
combine_kernel()
E('.section .rodata,"a"')
E(".p2align 6")
kd(f"{NAME}_kernel", V_END, S_END)
E(".p2align 6")
kd("combine_kernel", 56, 56)
open(sys.argv[1] if len(sys.argv) > 1 else "cdna_kernels/" + NAME + ".s", "w").write("\n".join(out) + "\n")
```

```python
import sys, os
STAMP = int(os.environ.get('STAMP', '0'))
TWOLOOP = int(os.environ.get('TWOLOOP', '0'))

NAME = "standalone__paged_block_table_kv_radixattention__sampling"
NW = 4
NSH = 128
SH_PARTS = 16
NPR = 256
NWG = NSH + NPR
NSLOT = 8
NUSED = 5
LDS_M = 1024
LDS_L = 2048
LDS_O = 4096
LDS_BYTES = LDS_O + NW * 16384
WS_O_BYTES = 512 * NSLOT * 1024
WS_ML_OFF = WS_O_BYTES
WS_BYTES = WS_O_BYTES + 512 * NSLOT * 8
KV_BYTES = 2112 * 65536
C_SCALE = 0.0625 * 1.4426950408889634

import struct
def f2u(f):
    return struct.unpack("<I", struct.pack("<f", f))[0]

out = []
def E(s=""):
    out.append(s)

V_TID, V_KOFF, V_VOFF, V_PHYS, V_J16, V_REM, V_M, V_L = 0, 1, 2, 3, 4, 5, 6, 7
V_T = 8
V_S = 16
V_P = 24
V_Q = 28
V_O = 60
V_K = 124
V_V = 188
V_END = 256 if STAMP else 252

S_KSRD, S_VSRD, S_XSRD = 4, 8, 12
S_ARG = 16
S_W, S_KVH, S_SH, S_BQ, S_KVHOFF = 32, 33, 34, 35, 36
S_NSTEP, S_IDX, S_JA, S_JB = 37, 38, 39, 40
S_OFFA, S_OFFB = 41, 42
S_VO = 44
S_C = 52
S_SELLO, S_SELHI = 53, 54
S_T0, S_T1, S_T2, S_T3 = 55, 56, 57, 58
S_MASK = 60
S_CTX8 = 76
S_NJA, S_NJB = 84, 85
S_N = 86
S_TK = 88
S_BASE = 92
S_PART, S_SLOT, S_LGP = 93, 94, 95
S_END = 102 if STAMP else 96

def kreg(tile, i):
    return V_K + tile * 32 + i * 4
def vreg(tile, e, hf):
    return V_V + ((tile * 4 + e) * 2 + hf) * 4
def oreg(hf, jj):
    return V_O + (hf * 8 + jj) * 4
def q4(r):
    return f"v[{r}:{r+3}]"

def emit_stamp():
    if not STAMP: return
    E(f"  s_memtime s[96:97]")
    E(f"  s_waitcnt lgkmcnt(0)")
    E(f"  s_mov_b32 m0, s98")
    E(f"  s_nop 0")
    E(f"  v_writelane_b32 v252, s96, m0")
    E(f"  s_add_u32 s98, s98, 1")
    E(f"  s_and_b32 s98, s98, 63")

def emit_next_offsets():
    E(f"  s_lshl_b32 s{S_T0}, s{S_IDX}, 1")
    E(f"  s_and_b32 s{S_T0}, s{S_T0}, 63")
    E(f"  s_add_u32 s{S_T1}, s{S_T0}, 1")
    E(f"  v_readlane_b32 s{S_OFFA}, v{V_PHYS}, s{S_T0}")
    E(f"  v_readlane_b32 s{S_OFFB}, v{V_PHYS}, s{S_T1}")
    E(f"  v_readlane_b32 s{S_NJA}, v{V_J16}, s{S_T0}")
    E(f"  v_readlane_b32 s{S_NJB}, v{V_J16}, s{S_T1}")
    E(f"  s_cmp_lt_u32 s{S_IDX}, s{S_NSTEP}")
    E(f"  s_nop 2")
    E(f"  s_cselect_b32 s{S_OFFA}, s{S_OFFA}, 2112")
    E(f"  s_cselect_b32 s{S_OFFB}, s{S_OFFB}, 2112")
    E(f"  s_lshl_b32 s{S_OFFA}, s{S_OFFA}, 16")
    E(f"  s_lshl_b32 s{S_OFFB}, s{S_OFFB}, 16")
    E(f"  s_add_u32 s{S_OFFA}, s{S_OFFA}, s{S_KVHOFF}")
    E(f"  s_add_u32 s{S_OFFB}, s{S_OFFB}, s{S_KVHOFF}")
    for t, so in ((0, S_OFFA), (1, S_OFFB)):
        for e in range(4):
            if e == 0:
                E(f"  s_mov_b32 s{S_VO + t*4}, s{so}")
            else:
                E(f"  s_add_u32 s{S_VO + t*4 + e}, s{so}, {e*4096}")

def emit_k_loads(nt):
    for t, so in ((0, S_OFFA), (1, S_OFFB)):
        for i in range(8):
            E(f"  buffer_load_dwordx4 {q4(kreg(t,i))}, v{V_KOFF}, s[{S_KSRD}:{S_KSRD+3}], s{so} offen offset:{i*64}{nt}")

def emit_v_loads(nt):
    for t in range(2):
        for e in range(4):
            for hf in range(2):
                E(f"  buffer_load_dwordx4 {q4(vreg(t,e,hf))}, v{V_VOFF}, s[{S_VSRD}:{S_VSRD+3}], s{S_VO+t*4+e} offen offset:{hf*256}{nt}")

def emit_xreduce(reg, tmp, op):
    E(f"  v_mov_b32 v{tmp}, v{reg}")
    E(f"  s_nop 1")
    E(f"  v_permlane32_swap_b32 v{reg}, v{tmp}")
    E(f"  s_nop 1")
    E(f"  {op} v{reg}, v{reg}, v{tmp}")
    E(f"  v_mov_b32 v{tmp}, v{reg}")
    E(f"  s_nop 1")
    E(f"  v_permlane16_swap_b32 v{reg}, v{tmp}")
    E(f"  s_nop 1")
    E(f"  {op} v{reg}, v{reg}, v{tmp}")

def emit_step(has_next, nt, tag):
    SA, SB = V_S, V_S + 4
    E(f"  s_waitcnt vmcnt(16)")
    emit_stamp()
    for i in range(8):
        for t, sr in ((0, SA), (1, SB)):
            c = "0" if i == 0 else q4(sr)
            E(f"  v_mfma_f32_16x16x32_bf16 {q4(sr)}, {q4(kreg(t,i))}, {q4(V_Q+4*i)}, {c}")
    if has_next:
        E(f"  s_add_u32 s{S_IDX}, s{S_IDX}, 1")
        emit_next_offsets()
        emit_k_loads(nt)
    E(f"  v_subrev_u32 v{V_T}, s{S_JA}, v{V_REM}")
    E(f"  v_subrev_u32 v{V_T+1}, s{S_JB}, v{V_REM}")
    for r in range(4):
        E(f"  v_cmp_gt_i32 s[{S_MASK+2*r}:{S_MASK+2*r+1}], v{V_T}, {r}")
    for r in range(4):
        E(f"  v_cmp_gt_i32 s[{S_MASK+8+2*r}:{S_MASK+8+2*r+1}], v{V_T+1}, {r}")
    E(f"  v_mov_b32 v{V_T+2}, 0xff800000")
    E(f"  s_nop 7")
    for r in range(8):
        E(f"  v_cndmask_b32 v{V_S+r}, v{V_T+2}, v{V_S+r}, s[{S_MASK+2*r}:{S_MASK+2*r+1}]")
    E(f"  v_max3_f32 v{V_T}, v{V_S}, v{V_S+1}, v{V_S+2}")
    E(f"  v_max3_f32 v{V_T+1}, v{V_S+3}, v{V_S+4}, v{V_S+5}")
    E(f"  v_max3_f32 v{V_T}, v{V_S+6}, v{V_S+7}, v{V_T}")
    E(f"  v_max_f32 v{V_T}, v{V_T}, v{V_T+1}")
    emit_xreduce(V_T, V_T+1, "v_max_f32")
    E(f"  v_max_f32 v{V_T}, v{V_M}, v{V_T}")
    E(f"  v_max_f32 v{V_T+1}, 0xff7fffff, v{V_T}")
    E(f"  v_mul_f32 v{V_T+1}, s{S_C}, v{V_T+1}")
    E(f"  v_fma_f32 v{V_T+2}, v{V_M}, s{S_C}, -v{V_T+1}")
    E(f"  v_exp_f32 v{V_T+2}, v{V_T+2}")
    E(f"  v_mov_b32 v{V_M}, v{V_T}")
    for r in range(8):
        E(f"  v_fma_f32 v{V_S+r}, v{V_S+r}, s{S_C}, -v{V_T+1}")
    for r in range(8):
        E(f"  v_exp_f32 v{V_S+r}, v{V_S+r}")
    E(f"  v_cmp_neq_f32 vcc, 1.0, v{V_T+2}")
    E(f"  v_mul_f32 v{V_L}, v{V_L}, v{V_T+2}")
    E(f"  v_add_f32 v{V_T+3}, v{V_S}, v{V_S+1}")
    E(f"  v_add_f32 v{V_T+4}, v{V_S+2}, v{V_S+3}")
    E(f"  v_add_f32 v{V_T+5}, v{V_S+4}, v{V_S+5}")
    E(f"  v_add_f32 v{V_T+6}, v{V_S+6}, v{V_S+7}")
    E(f"  v_add_f32 v{V_T+3}, v{V_T+3}, v{V_T+4}")
    E(f"  v_add_f32 v{V_T+5}, v{V_T+5}, v{V_T+6}")
    E(f"  v_add_f32 v{V_T+3}, v{V_T+3}, v{V_T+5}")
    E(f"  v_add_f32 v{V_L}, v{V_L}, v{V_T+3}")
    for k in range(4):
        E(f"  v_cvt_pk_bf16_f32 v{V_P+k}, v{V_S+2*k}, v{V_S+2*k+1}")
    E(f"  s_cbranch_vccz L_noscale_{tag}")
    for r in range(64):
        E(f"  v_mul_f32 v{V_O+r}, v{V_O+r}, v{V_T+2}")
    E(f"L_noscale_{tag}:")
    if has_next:
        E(f"  s_waitcnt vmcnt(16)")
    else:
        E(f"  s_waitcnt vmcnt(0)")
    emit_stamp()
    n = 0
    for hf in range(2):
        for jj in range(8):
            tq = V_T + (n & 1) * 4
            sel = S_SELHI if (jj & 1) else S_SELLO
            w = jj >> 1
            for t in range(2):
                for pp in range(2):
                    lo = vreg(t, 2*pp, hf) + w
                    hi = vreg(t, 2*pp+1, hf) + w
                    E(f"  v_perm_b32 v{tq + t*2 + pp}, v{hi}, v{lo}, s{sel}")
            E(f"  s_nop 1")
            E(f"  v_mfma_f32_16x16x32_bf16 {q4(oreg(hf,jj))}, {q4(tq)}, {q4(V_P)}, {q4(oreg(hf,jj))}")
            n += 1
    if has_next:
        emit_v_loads(nt)
        E(f"  s_mov_b32 s{S_JA}, s{S_NJA}")
        E(f"  s_mov_b32 s{S_JB}, s{S_NJB}")

def main_kernel():
    E(f".globl {NAME}_kernel")
    E(f".p2align 8")
    E(f".type {NAME}_kernel,@function")
    E(f"{NAME}_kernel:")
    E(f"  s_cmp_ge_u32 s2, {NWG}")
    E(f"  s_cbranch_scc1 L_main_end")
    if STAMP:
        E(f"  s_mov_b32 s98, 0")
        E(f"  v_mov_b32 v252, 0")
    emit_stamp()
    E(f"  s_load_dwordx16 s[{S_ARG}:{S_ARG+15}], s[0:1], 0")
    VL, VCOL, VG, VBL = 8, 9, 10, 11
    E(f"  v_and_b32 v{VL}, 63, v0")
    E(f"  v_lshrrev_b32 v12, 6, v0")
    E(f"  v_and_b32 v{VCOL}, 15, v0")
    E(f"  v_readfirstlane_b32 s{S_W}, v12")
    E(f"  v_lshrrev_b32 v{VG}, 4, v{VL}")
    E(f"  s_nop 3")
    E(f"  s_and_b32 s{S_KVH}, s2, 7")
    E(f"  s_lshl_b32 s{S_KVHOFF}, s{S_KVH}, 9")
    E(f"  s_lshr_b32 s{S_BQ}, s2, 3")
    E(f"  s_mov_b32 s{S_C}, {f2u(C_SCALE):#x}")
    E(f"  s_mov_b32 s{S_SELLO}, 0x05040100")
    E(f"  s_mov_b32 s{S_SELHI}, 0x07060302")
    E(f"  s_cmp_ge_u32 s2, {NPR}")
    E(f"  s_cselect_b32 s{S_SH}, 1, 0")
    E(f"  s_cbranch_scc1 L_pro_shared")
    E(f"  v_mov_b32 v{VBL}, s{S_BQ}")
    E(f"  s_lshl_b32 s{S_T0}, s{S_BQ}, 2")
    E(f"  s_lshl_b32 s{S_T1}, s{S_BQ}, 9")
    E(f"  s_mov_b32 s{S_PART}, s{S_W}")
    E(f"  s_mov_b32 s{S_SLOT}, 0")
    E(f"  s_mov_b32 s{S_LGP}, {NW.bit_length()-1}")
    E(f"  s_waitcnt lgkmcnt(0)")
    E(f"  s_load_dword s{S_CTX8}, s[24:25], s{S_T0}")
    E(f"  s_branch L_pro_common")
    E(f"L_pro_shared:")
    E(f"  s_sub_u32 s{S_BQ}, s{S_BQ}, {NPR//8}")
    E(f"  s_lshr_b32 s{S_SLOT}, s{S_BQ}, 2")
    E(f"  s_and_b32 s{S_BQ}, s{S_BQ}, 3")
    E(f"  s_lshl_b32 s{S_PART}, s{S_SLOT}, 2")
    E(f"  s_add_u32 s{S_PART}, s{S_PART}, s{S_W}")
    E(f"  s_add_u32 s{S_SLOT}, s{S_SLOT}, 1")
    E(f"  s_mov_b32 s{S_LGP}, {SH_PARTS.bit_length()-1}")
    E(f"  v_lshrrev_b32 v{VBL}, 1, v{VCOL}")
    E(f"  s_lshl_b32 s{S_T0}, s{S_BQ}, 3")
    E(f"  v_add_u32 v{VBL}, s{S_T0}, v{VBL}")
    E(f"  s_lshl_b32 s{S_T0}, s{S_BQ}, 5")
    E(f"  s_mov_b32 s{S_T1}, 0")
    E(f"  s_waitcnt lgkmcnt(0)")
    E(f"  s_load_dwordx8 s[{S_CTX8}:{S_CTX8+7}], s[24:25], s{S_T0}")
    E(f"L_pro_common:")
    E(f"  s_mov_b32 s{S_KSRD}, s18")
    E(f"  s_and_b32 s{S_KSRD+1}, s19, 0xffff")
    E(f"  s_mov_b32 s{S_KSRD+2}, {KV_BYTES}")
    E(f"  s_mov_b32 s{S_KSRD+3}, 0x00020000")
    E(f"  s_mov_b32 s{S_VSRD}, s20")
    E(f"  s_and_b32 s{S_VSRD+1}, s21, 0xffff")
    E(f"  s_mov_b32 s{S_VSRD+2}, {KV_BYTES}")
    E(f"  s_mov_b32 s{S_VSRD+3}, 0x00020000")
    E(f"  s_mov_b32 s{S_XSRD}, s22")
    E(f"  s_and_b32 s{S_XSRD+1}, s23, 0xffff")
    E(f"  s_mov_b32 s{S_XSRD+2}, 16384")
    E(f"  s_mov_b32 s{S_XSRD+3}, 0x00020000")
    E(f"  v_and_b32 v12, 31, v{VL}")
    E(f"  v_lshlrev_b32 v12, 4, v12")
    E(f"  v_lshrrev_b32 v13, 5, v{VL}")
    E(f"  v_lshl_add_u32 v13, v13, 9, v12")
    TB = V_K
    R0 = V_K + 64
    OWN = V_K + 68
    E(f"  s_mov_b32 s{S_T2}, 4096")
    E(f"  s_mov_b32 s{S_T3}, 8192")
    E(f"  s_mov_b32 s{S_BASE}, 12288")
    so = ["0", f"s{S_T2}", f"s{S_T3}", f"s{S_BASE}"]
    E(f"  buffer_load_dwordx4 {q4(R0)}, v12, s[{S_XSRD}:{S_XSRD+3}], 0 offen")
    E(f"  buffer_load_dwordx4 {q4(OWN)}, v12, s[{S_XSRD}:{S_XSRD+3}], s{S_T1} offen")
    for i in range(16):
        E(f"  buffer_load_dwordx4 {q4(TB+4*i)}, v13, s[{S_XSRD}:{S_XSRD+3}], {so[i>>2]} offen offset:{(i&3)*1024}")
    E(f"  v_lshlrev_b32 v14, 2, v{VBL}")
    E(f"  global_load_dword v{V_REM}, v14, s[24:25]")
    E(f"  v_and_b32 v14, 1, v{VCOL}")
    E(f"  v_lshl_add_u32 v14, v{VBL}, 4, v14")
    E(f"  s_lshl_b32 s{S_T0}, s{S_KVH}, 1")
    E(f"  v_add_u32 v14, s{S_T0}, v14")
    E(f"  v_lshlrev_b32 v15, 9, v14")
    E(f"  v_lshl_add_u32 v15, v{VG}, 4, v15")
    for i in range(8):
        E(f"  global_load_dwordx4 {q4(V_Q+4*i)}, v15, s[16:17] offset:{i*64}")
    E(f"  v_lshlrev_b32 v{V_KOFF}, 12, v{VCOL}")
    E(f"  v_lshl_add_u32 v{V_KOFF}, v{VG}, 4, v{V_KOFF}")
    E(f"  v_lshlrev_b32 v{V_VOFF}, 14, v{VG}")
    E(f"  v_lshl_add_u32 v{V_VOFF}, v{VCOL}, 4, v{V_VOFF}")
    E(f"  s_waitcnt lgkmcnt(0)")
    E(f"  s_cmp_eq_u32 s{S_SH}, 0")
    E(f"  s_cbranch_scc1 L_pro_nomax")
    for k in range(1, 8):
        E(f"  s_max_i32 s{S_CTX8}, s{S_CTX8}, s{S_CTX8+k}")
    E(f"L_pro_nomax:")
    E(f"  s_max_i32 s{S_CTX8}, s{S_CTX8}, 0")
    E(f"  s_min_i32 s{S_CTX8}, s{S_CTX8}, 2048")
    E(f"  s_add_u32 s{S_CTX8}, s{S_CTX8}, 15")
    E(f"  s_lshr_b32 s{S_CTX8}, s{S_CTX8}, 4")
    E(f"  v_mov_b32 v{V_M}, 0xff800000")
    E(f"  v_mov_b32 v{V_L}, 0")
    for r in range(64):
        E(f"  v_mov_b32 v{V_O+r}, 0")
    E(f"  s_waitcnt vmcnt(9)")
    for c in range(4):
        E(f"  v_xor_b32 v{12+c}, v{TB+c}, v{R0+c}")
        for i in range(1, 16):
            E(f"  v_xor_b32 v{TB+4*i+c}, v{TB+4*i+c}, v{R0+c}")
        for i in range(1, 16, 2):
            if i + 1 < 16:
                E(f"  v_or3_b32 v{12+c}, v{12+c}, v{TB+4*i+c}, v{TB+4*(i+1)+c}")
            else:
                E(f"  v_or_b32 v{12+c}, v{12+c}, v{TB+4*i+c}")
    E(f"  v_and_b32 v{TB}, 31, v{VL}")
    E(f"  v_lshlrev_b32 v{TB}, 2, v{TB}")
    for c in range(4):
        E(f"  v_cmp_ne_u32 s[{S_MASK+2*c}:{S_MASK+2*c+1}], 0, v{12+c}")
    for c in range(4):
        E(f"  v_add_u32 v{TB+1+c}, {c}, v{TB}")
        E(f"  v_cmp_gt_u32 s[{S_MASK+8+2*c}:{S_MASK+8+2*c+1}], s{S_CTX8}, v{TB+1+c}")
    E(f"  s_nop 3")
    E(f"  s_cmp_eq_u32 s{S_SH}, 1")
    E(f"  s_cselect_b32 s{S_T0}, -1, 0")
    for c in range(4):
        E(f"  s_or_b32 s{S_TK+c}, s{S_MASK+2*c}, s{S_MASK+2*c+1}")
        E(f"  s_xor_b32 s{S_TK+c}, s{S_TK+c}, s{S_T0}")
        E(f"  s_and_b32 s{S_TK+c}, s{S_TK+c}, s{S_MASK+8+2*c}")
    E(f"  s_mov_b32 s{S_N}, 0")
    for c in range(4):
        E(f"  v_mbcnt_lo_u32_b32 v12, s{S_TK+c}, 0")
        E(f"  v_add_u32 v12, s{S_N}, v12")
        E(f"  v_lshlrev_b32 v12, 3, v12")
        E(f"  v_mov_b32 v14, v{OWN+c}")
        E(f"  v_lshlrev_b32 v15, 4, v{TB+1+c}")
        E(f"  s_mov_b32 exec_lo, s{S_TK+c}")
        E(f"  s_mov_b32 exec_hi, 0")
        E(f"  ds_write_b64 v12, v[14:15]")
        E(f"  s_mov_b64 exec, -1")
        E(f"  s_bcnt1_i32_b32 s{S_T0}, s{S_TK+c}")
        E(f"  s_add_u32 s{S_N}, s{S_N}, s{S_T0}")
    E(f"  s_add_u32 s{S_T0}, s{S_N}, 1")
    E(f"  s_lshr_b32 s{S_T0}, s{S_T0}, 1")
    E(f"  s_lshr_b32 s{S_T1}, s{S_T0}, s{S_LGP}")
    E(f"  s_lshl_b32 s{S_T2}, s{S_T1}, s{S_LGP}")
    E(f"  s_sub_u32 s{S_T2}, s{S_T0}, s{S_T2}")
    E(f"  s_mul_i32 s{S_T3}, s{S_PART}, s{S_T1}")
    E(f"  s_min_u32 s{S_BASE}, s{S_PART}, s{S_T2}")
    E(f"  s_add_u32 s{S_T3}, s{S_T3}, s{S_BASE}")
    E(f"  s_cmp_lt_u32 s{S_PART}, s{S_T2}")
    E(f"  s_cselect_b32 s{S_BASE}, 1, 0")
    E(f"  s_add_u32 s{S_NSTEP}, s{S_T1}, s{S_BASE}")
    E(f"  s_lshl_b32 s{S_T3}, s{S_T3}, 1")
    E(f"  v_add_u32 v12, s{S_T3}, v{VL}")
    E(f"  v_lshlrev_b32 v13, 3, v12")
    E(f"  v_and_b32 v13, 0x3ff, v13")
    E(f"  s_waitcnt lgkmcnt(0)")
    E(f"  ds_read_b64 v[14:15], v13")
    E(f"  v_cmp_gt_u32 vcc, s{S_N}, v12")
    E(f"  v_mov_b32 v13, 0x100000")
    E(f"  s_waitcnt lgkmcnt(0)")
    E(f"  v_mov_b32 v12, 2112")
    E(f"  v_cndmask_b32 v{V_PHYS}, v12, v14, vcc")
    E(f"  v_cndmask_b32 v{V_J16}, v13, v15, vcc")
    E(f"  s_waitcnt vmcnt(0)")
    E(f"  v_lshlrev_b32 v12, 2, v{VG}")
    E(f"  v_max_i32 v{V_REM}, 0, v{V_REM}")
    E(f"  v_min_i32 v{V_REM}, 2048, v{V_REM}")
    E(f"  v_sub_u32 v{V_REM}, v{V_REM}, v12")
    emit_stamp()
    E(f"  s_cmp_eq_u32 s{S_NSTEP}, 0")
    E(f"  s_cbranch_scc1 L_epilogue")
    E(f"  s_mov_b32 s{S_IDX}, 0")
    paths = [("pr", " nt"), ("sh", "")] if TWOLOOP else [("a", " nt")]
    if TWOLOOP:
        E(f"  s_cmp_eq_u32 s{S_SH}, 1")
        E(f"  s_cbranch_scc1 L_path_sh")
    for tag, nt in paths:
        E(f"L_path_{tag}:")
        emit_next_offsets()
        emit_k_loads(nt)
        emit_v_loads(nt)
        E(f"  s_mov_b32 s{S_JA}, s{S_NJA}")
        E(f"  s_mov_b32 s{S_JB}, s{S_NJB}")
        E(f"L_loop_{tag}:")
        emit_step(True, nt, tag)
        E(f"  s_cmp_lt_u32 s{S_IDX}, s{S_NSTEP}")
        E(f"  s_cbranch_scc1 L_loop_{tag}")
        if tag == "pr":
            E(f"  s_branch L_epilogue")
    E(f"L_epilogue:")
    E(f"  s_waitcnt vmcnt(0)")
    E(f"  s_nop 15")
    emit_xreduce(V_L, V_T, "v_add_f32")
    E(f"  v_and_b32 v{VL}, 63, v0")
    E(f"  v_and_b32 v{VCOL}, 15, v0")
    E(f"  v_lshrrev_b32 v{VG}, 4, v{VL}")
    E(f"  v_lshlrev_b32 v12, 2, v0")
    E(f"  v_lshlrev_b32 v13, 2, v{VL}")
    E(f"  ds_write_b32 v12, v{V_M} offset:{LDS_M}")
    E(f"  s_waitcnt lgkmcnt(0)")
    E(f"  s_barrier")
    for w in range(NW):
        E(f"  ds_read_b32 v{V_S+w}, v13 offset:{LDS_M + w*256}")
    E(f"  s_waitcnt lgkmcnt(0)")
    E(f"  v_max3_f32 v14, v{V_S}, v{V_S+1}, v{V_S+2}")
    E(f"  v_max_f32 v14, v14, v{V_S+3}")
    E(f"  v_max_f32 v15, 0xff7fffff, v14")
    E(f"  v_mul_f32 v15, s{S_C}, v15")
    E(f"  v_fma_f32 v15, v{V_M}, s{S_C}, -v15")
    E(f"  v_exp_f32 v15, v15")
    E(f"  s_nop 0")
    E(f"  v_mul_f32 v{V_L}, v{V_L}, v15")
    for r in range(64):
        E(f"  v_mul_f32 v{V_O+r}, v{V_O+r}, v15")
    E(f"  ds_write_b32 v12, v{V_L} offset:{LDS_L}")
    E(f"  s_lshl_b32 s{S_T0}, s{S_W}, 14")
    E(f"  v_lshlrev_b32 v12, 4, v{VL}")
    E(f"  v_add_u32 v15, s{S_T0}, v12")
    for qd in range(16):
        E(f"  ds_write_b128 v15, {q4(V_O+4*qd)} offset:{LDS_O + qd*1024}")
    E(f"  s_waitcnt lgkmcnt(0)")
    E(f"  s_barrier")
    E(f"  s_lshl_b32 s{S_T0}, s{S_W}, 12")
    E(f"  v_add_u32 v15, s{S_T0}, v12")
    for w in range(NW):
        for k in range(4):
            E(f"  ds_read_b128 {q4(V_K + (w*4+k)*4)}, v15 offset:{LDS_O + w*16384 + k*1024}")
    for w in range(NW):
        E(f"  ds_read_b32 v{V_S+w}, v13 offset:{LDS_L + w*256}")
    E(f"  s_cmp_eq_u32 s{S_SH}, 1")
    E(f"  s_cbranch_scc1 L_epi_sh")
    E(f"  v_mov_b32 v{VBL}, s{S_BQ}")
    E(f"  v_cmp_gt_u32 vcc, 2, v{VCOL}")
    E(f"  s_branch L_epi_common")
    E(f"L_epi_sh:")
    E(f"  v_lshrrev_b32 v{VBL}, 1, v{VCOL}")
    E(f"  s_lshl_b32 s{S_T0}, s{S_BQ}, 3")
    E(f"  v_add_u32 v{VBL}, s{S_T0}, v{VBL}")
    E(f"  s_mov_b64 vcc, -1")
    E(f"L_epi_common:")
    E(f"  v_and_b32 v12, 1, v{VCOL}")
    E(f"  v_lshl_add_u32 v12, v{VBL}, 4, v12")
    E(f"  s_lshl_b32 s{S_T0}, s{S_KVH}, 1")
    E(f"  v_add_u32 v12, s{S_T0}, v12")
    lgs = NSLOT.bit_length() - 1
    E(f"  v_lshlrev_b32 v12, {lgs}, v12")
    E(f"  v_add_u32 v12, s{S_SLOT}, v12")
    E(f"  v_lshlrev_b32 v15, 10, v12")
    E(f"  v_lshl_add_u32 v15, v{VG}, 7, v15")
    E(f"  s_lshr_b32 s{S_T0}, s{S_W}, 1")
    E(f"  s_lshl_b32 s{S_T0}, s{S_T0}, 9")
    E(f"  s_and_b32 s{S_T1}, s{S_W}, 1")
    E(f"  s_lshl_b32 s{S_T1}, s{S_T1}, 4")
    E(f"  s_add_u32 s{S_T0}, s{S_T0}, s{S_T1}")
    E(f"  v_add_u32 v15, s{S_T0}, v15")
    E(f"  v_lshlrev_b32 v12, 3, v12")
    E(f"  v_add_u32 v12, {WS_ML_OFF}, v12")
    E(f"  s_mov_b32 s{S_XSRD}, s30")
    E(f"  s_and_b32 s{S_XSRD+1}, s31, 0xffff")
    E(f"  s_mov_b32 s{S_XSRD+2}, {WS_BYTES}")
    E(f"  s_mov_b32 s{S_XSRD+3}, 0x00020000")
    E(f"  s_waitcnt lgkmcnt(0)")
    for k in range(4):
        for r in range(4):
            a0 = V_K + (0*4+k)*4 + r; a1 = V_K + (1*4+k)*4 + r; a2 = V_K + (2*4+k)*4 + r; a3 = V_K + (3*4+k)*4 + r
            E(f"  v_add_f32 v{a0}, v{a0}, v{a1}")
            E(f"  v_add_f32 v{a2}, v{a2}, v{a3}")
            E(f"  v_add_f32 v{V_V + r*4 + k}, v{a0}, v{a2}")
    E(f"  v_add_f32 v{V_S}, v{V_S}, v{V_S+1}")
    E(f"  v_add_f32 v{V_S+2}, v{V_S+2}, v{V_S+3}")
    E(f"  v_add_f32 v{V_S+1}, v{V_S}, v{V_S+2}")
    E(f"  v_mov_b32 v{V_S}, v14")
    E(f"  s_mov_b64 exec, vcc")
    for r in range(4):
        E(f"  buffer_store_dwordx4 {q4(V_V + r*4)}, v15, s[{S_XSRD}:{S_XSRD+3}], 0 offen offset:{r*32}")
    E(f"  s_cmp_lg_u32 s{S_W}, 0")
    E(f"  s_cbranch_scc1 L_epi_done")
    E(f"  v_cmp_eq_u32 vcc, 0, v{VG}")
    E(f"  s_and_b64 exec, exec, vcc")
    E(f"  buffer_store_dwordx2 v[{V_S}:{V_S+1}], v12, s[{S_XSRD}:{S_XSRD+3}], 0 offen")
    E(f"L_epi_done:")
    if STAMP:
        emit_stamp()
        E(f"  s_mov_b64 exec, -1")
        E(f"  s_lshl_b32 s99, s2, 2")
        E(f"  s_add_u32 s99, s99, s{S_W}")
        E(f"  s_lshl_b32 s99, s99, 8")
        E(f"  s_add_u32 s99, s99, 0x800000")
        E(f"  v_and_b32 v253, 63, v0")
        E(f"  v_lshlrev_b32 v253, 2, v253")
        E(f"  v_add_u32 v253, s99, v253")
        E(f"  global_store_dword v253, v252, s[30:31]")
    E(f"L_main_end:")
    E(f"  s_endpgm")

def combine_kernel():
    MASKRAW = -998244352.0 * 16.0
    E(f".globl combine_kernel")
    E(f".p2align 8")
    E(f".type combine_kernel,@function")
    E(f"combine_kernel:")
    E(f"  s_cmp_ge_u32 s2, 128")
    E(f"  s_cbranch_scc1 L_cmb_end")
    E(f"  s_load_dwordx16 s[16:31], s[0:1], 0")
    E(f"  v_lshrrev_b32 v1, 6, v0")
    E(f"  v_and_b32 v2, 63, v0")
    E(f"  s_nop 0")
    E(f"  v_readfirstlane_b32 s3, v1")
    E(f"  s_lshl_b32 s4, s2, 2")
    E(f"  s_nop 2")
    E(f"  s_add_u32 s4, s4, s3")
    E(f"  s_mov_b32 s52, {f2u(C_SCALE):#x}")
    E(f"  s_waitcnt lgkmcnt(0)")
    E(f"  s_lshl_b32 s5, s4, {(NSLOT*8).bit_length()-1}")
    E(f"  s_add_u32 s5, s5, {WS_ML_OFF}")
    assert NSLOT == 8
    E(f"  s_load_dwordx16 s[32:47], s[30:31], s5")
    E(f"  s_lshr_b32 s6, s4, 4")
    E(f"  s_lshl_b32 s7, s6, 2")
    E(f"  s_load_dword s48, s[24:25], s7")
    E(f"  s_mov_b32 s8, s30")
    E(f"  s_and_b32 s9, s31, 0xffff")
    E(f"  s_mov_b32 s10, {WS_BYTES}")
    E(f"  s_mov_b32 s11, 0x00020000")
    E(f"  s_lshl_b32 s12, s4, {10 + NSLOT.bit_length()-1}")
    E(f"  v_lshlrev_b32 v3, 4, v2")
    E(f"  s_add_u32 s13, s12, 4096")
    for s in range(NUSED):
        E(f"  buffer_load_dwordx4 v[{8+4*s}:{11+4*s}], v3, s[8:11], s{12 + (s>>2)} offen offset:{(s&3)*1024}")
    E(f"  s_waitcnt lgkmcnt(0)")
    E(f"  v_mov_b32 v4, s32")
    for s in range(1, NUSED):
        E(f"  v_max_f32 v4, s{32+2*s}, v4")
    E(f"  s_max_i32 s48, s48, 0")
    E(f"  s_min_i32 s48, s48, 2048")
    E(f"  s_sub_u32 s49, 2048, s48")
    E(f"  s_mov_b32 s50, 0")
    E(f"  s_cmp_eq_u32 s49, 0")
    E(f"  s_cbranch_scc1 L_cmb_fast")
    E(f"  v_cmp_gt_f32 vcc, {f2u(MASKRAW + 2048.0):#x}, v4")
    E(f"  s_nop 4")
    E(f"  s_cbranch_vccz L_cmb_fast")
    E(f"  s_mov_b32 s50, 1")
    E(f"  v_max_f32 v4, {f2u(MASKRAW):#x}, v4")
    E(f"L_cmb_fast:")
    E(f"  v_max_f32 v4, 0xff7fffff, v4")
    E(f"  v_mul_f32 v5, s52, v4")
    E(f"  v_mov_b32 v6, 0")
    for k in range(4):
        E(f"  v_mov_b32 v{40+k}, 0")
    E(f"  s_waitcnt vmcnt(0)")
    for s in range(NUSED):
        E(f"  v_mov_b32 v7, s{32+2*s}")
        E(f"  v_fma_f32 v7, v7, s52, -v5")
        E(f"  v_exp_f32 v7, v7")
        E(f"  s_nop 0")
        E(f"  v_fma_f32 v6, v7, s{33+2*s}, v6")
        for k in range(4):
            E(f"  v_fma_f32 v{40+k}, v7, v{8+4*s+k}, v{40+k}")
    E(f"  s_cmp_eq_u32 s50, 0")
    E(f"  s_cbranch_scc1 L_cmb_out")
    E(f"  v_mov_b32 v7, {f2u(MASKRAW):#x}")
    E(f"  v_fma_f32 v7, v7, s52, -v5")
    E(f"  v_exp_f32 v7, v7")
    E(f"  v_cvt_f32_u32 v44, s49")
    E(f"  v_fma_f32 v6, v7, v44, v6")
    E(f"  s_mov_b32 s8, s20")
    E(f"  s_and_b32 s9, s21, 0xffff")
    E(f"  s_mov_b32 s10, {KV_BYTES}")
    E(f"  s_mov_b32 s11, 0x00020000")
    E(f"  s_and_b32 s13, s4, 15")
    E(f"  s_lshr_b32 s13, s13, 1")
    E(f"  s_lshl_b32 s13, s13, 9")
    E(f"  v_lshlrev_b32 v3, 3, v2")
    for k in range(4):
        E(f"  v_mov_b32 v{46+k}, 0")
    E(f"L_cmb_slow:")
    E(f"  s_lshr_b32 s14, s48, 4")
    E(f"  s_lshl_b32 s14, s14, 2")
    E(f"  s_lshl_b32 s15, s6, 9")
    E(f"  s_add_u32 s14, s14, s15")
    E(f"  s_load_dword s15, s[22:23], s14")
    E(f"  s_waitcnt lgkmcnt(0)")
    E(f"  s_lshl_b32 s15, s15, 16")
    E(f"  s_and_b32 s14, s48, 15")
    E(f"  s_lshl_b32 s14, s14, 12")
    E(f"  s_add_u32 s15, s15, s14")
    E(f"  s_add_u32 s15, s15, s13")
    E(f"  buffer_load_dwordx2 v[50:51], v3, s[8:11], s15 offen")
    E(f"  s_waitcnt vmcnt(0)")
    E(f"  v_lshlrev_b32 v52, 16, v50")
    E(f"  v_and_b32 v53, 0xffff0000, v50")
    E(f"  v_lshlrev_b32 v54, 16, v51")
    E(f"  v_and_b32 v55, 0xffff0000, v51")
    for k in range(4):
        E(f"  v_add_f32 v{46+k}, v{46+k}, v{52+k}")
    E(f"  s_add_u32 s48, s48, 1")
    E(f"  s_cmp_lt_u32 s48, 2048")
    E(f"  s_cbranch_scc1 L_cmb_slow")
    for k in range(4):
        E(f"  v_fma_f32 v{40+k}, v7, v{46+k}, v{40+k}")
    E(f"L_cmb_out:")
    E(f"  v_rcp_f32 v6, v6")
    E(f"  s_nop 0")
    for k in range(4):
        E(f"  v_mul_f32 v{40+k}, v{40+k}, v6")
    E(f"  v_cvt_pk_bf16_f32 v44, v40, v41")
    E(f"  v_cvt_pk_bf16_f32 v45, v42, v43")
    E(f"  s_mov_b32 s8, s26")
    E(f"  s_and_b32 s9, s27, 0xffff")
    E(f"  s_mov_b32 s10, {512*512}")
    E(f"  s_mov_b32 s11, 0x00020000")
    E(f"  s_lshl_b32 s12, s4, 9")
    E(f"  v_lshlrev_b32 v3, 3, v2")
    E(f"  buffer_store_dwordx2 v[44:45], v3, s[8:11], s12 offen")
    E(f"L_cmb_end:")
    E(f"  s_endpgm")

def kd(name, vgpr, sgpr):
    E(f".amdhsa_kernel {name}")
    E(f"  .amdhsa_next_free_vgpr {vgpr}")
    E(f"  .amdhsa_next_free_sgpr {sgpr}")
    E(f"  .amdhsa_accum_offset {(vgpr+3)//4*4}")
    E(f"  .amdhsa_group_segment_fixed_size 0")
    E(f"  .amdhsa_kernarg_size 64")
    E(f"  .amdhsa_user_sgpr_count 2")
    E(f"  .amdhsa_user_sgpr_kernarg_segment_ptr 1")
    E(f"  .amdhsa_system_sgpr_workgroup_id_x 1")
    E(f"  .amdhsa_float_denorm_mode_32 3")
    E(f".end_amdhsa_kernel")

hdr = open("cdna_kernels/" + NAME + ".s.ref").read().split("; Override launch")[0]
E(hdr.rstrip())
E(f"; @launch kernel={NAME}_kernel grid=({NWG},1,1) block=({NW*64},1,1) lds={LDS_BYTES}")
E(f"; @launch kernel=combine_kernel grid=(128,1,1) block=(256,1,1) lds=0")
E('.amdgcn_target "amdgcn-amd-amdhsa--gfx950"')
E(".text")
main_kernel()
combine_kernel()
E('.section .rodata,"a"')
E(".p2align 6")
kd(f"{NAME}_kernel", V_END, S_END)
E(".p2align 6")
kd("combine_kernel", 56, 56)
open(sys.argv[1] if len(sys.argv) > 1 else "cdna_kernels/" + NAME + ".s", "w").write("\n".join(out) + "\n")
```

```python
import sys, os, struct
STAMP = int(os.environ.get('STAMP', '0'))
NAME = "standalone__paged_block_table_kv_radixattention__sampling"
NW = 8
NPW = 7
NWG = 256
SH_PARTS = 8
NSLOT = 16
NUSED = 9
WS_O_BYTES = 512 * NSLOT * 1024
WS_ML_OFF = WS_O_BYTES
WS_BYTES = WS_O_BYTES + 512 * NSLOT * 8
KV_BYTES = 2112 * 65536
C_SCALE = 0.0625 * 1.4426950408889634
LDS_LIST = 0
LDS_M = 2048
LDS_L = 4096
LDS_O = 6144
LDS_BYTES = LDS_O + NPW * 2048

def f2u(f):
    return struct.unpack("<I", struct.pack("<f", f))[0]
out = []
def E(s=""):
    out.append(s)

V_KOFF, V_VOFF, V_PHYS, V_J16, V_REM, V_M, V_L = 1, 2, 3, 4, 5, 6, 7
V_T = 8; V_S = 16; V_P = 24; V_Q = 28; V_O = 60; V_K = 124; V_V = 188
V_END = 256 if STAMP else 252
S_KSRD, S_VSRD, S_XSRD = 4, 8, 12
S_ARG = 16
S_W, S_KVH, S_SH, S_BQ, S_KVHOFF = 32, 33, 34, 35, 36
S_NSTEP, S_IDX, S_JA, S_JB = 37, 38, 39, 40
S_OFFA, S_OFFB = 41, 42
S_B = 43
S_VO = 44
S_C, S_SELLO, S_SELHI = 52, 53, 54
S_T0, S_T1, S_T2, S_T3 = 55, 56, 57, 58
S_LIST = 59
S_MASK = 60
S_CTX8 = 76
S_NJA, S_NJB, S_N = 84, 85, 86
S_TK = 88
S_BASE, S_PART, S_SLOT = 92, 93, 94
S_END = 102 if STAMP else 96

def kreg(tile, i): return V_K + tile * 32 + i * 4
def vreg(tile, e, hf): return V_V + ((tile * 4 + e) * 2 + hf) * 4
def oreg(hf, jj): return V_O + (hf * 8 + jj) * 4
def q4(r): return f"v[{r}:{r+3}]"

def emit_stamp():
    if not STAMP: return
    E(f"  s_memrealtime s[96:97]")
    E(f"  s_waitcnt lgkmcnt(0)")
    E(f"  s_mov_b32 m0, s98")
    E(f"  s_nop 0")
    E(f"  v_writelane_b32 v252, s96, m0")
    E(f"  s_add_u32 s98, s98, 1")
    E(f"  s_and_b32 s98, s98, 63")

def emit_next_offsets():
    E(f"  s_lshl_b32 s{S_T0}, s{S_IDX}, 1")
    E(f"  s_and_b32 s{S_T0}, s{S_T0}, 63")
    E(f"  s_add_u32 s{S_T1}, s{S_T0}, 1")
    E(f"  v_readlane_b32 s{S_OFFA}, v{V_PHYS}, s{S_T0}")
    E(f"  v_readlane_b32 s{S_OFFB}, v{V_PHYS}, s{S_T1}")
    E(f"  v_readlane_b32 s{S_NJA}, v{V_J16}, s{S_T0}")
    E(f"  v_readlane_b32 s{S_NJB}, v{V_J16}, s{S_T1}")
    E(f"  s_cmp_lt_u32 s{S_IDX}, s{S_NSTEP}")
    E(f"  s_nop 2")
    E(f"  s_cselect_b32 s{S_OFFA}, s{S_OFFA}, 2112")
    E(f"  s_cselect_b32 s{S_OFFB}, s{S_OFFB}, 2112")
    E(f"  s_lshl_b32 s{S_OFFA}, s{S_OFFA}, 16")
    E(f"  s_lshl_b32 s{S_OFFB}, s{S_OFFB}, 16")
    E(f"  s_add_u32 s{S_OFFA}, s{S_OFFA}, s{S_KVHOFF}")
    E(f"  s_add_u32 s{S_OFFB}, s{S_OFFB}, s{S_KVHOFF}")
    for t, so in ((0, S_OFFA), (1, S_OFFB)):
        for e in range(4):
            if e == 0: E(f"  s_mov_b32 s{S_VO + t*4}, s{so}")
            else: E(f"  s_add_u32 s{S_VO + t*4 + e}, s{so}, {e*4096}")

def emit_k_loads(nt):
    for t, so in ((0, S_OFFA), (1, S_OFFB)):
        for i in range(8):
            E(f"  buffer_load_dwordx4 {q4(kreg(t,i))}, v{V_KOFF}, s[{S_KSRD}:{S_KSRD+3}], s{so} offen offset:{i*64}{nt}")

def emit_v_loads(nt):
    for t in range(2):
        for e in range(4):
            for hf in range(2):
                E(f"  buffer_load_dwordx4 {q4(vreg(t,e,hf))}, v{V_VOFF}, s[{S_VSRD}:{S_VSRD+3}], s{S_VO+t*4+e} offen offset:{hf*256}{nt}")

def emit_xreduce(reg, tmp, op):
    E(f"  v_mov_b32 v{tmp}, v{reg}")
    E(f"  s_nop 1")
    E(f"  v_permlane32_swap_b32 v{reg}, v{tmp}")
    E(f"  s_nop 1")
    E(f"  {op} v{reg}, v{reg}, v{tmp}")
    E(f"  v_mov_b32 v{tmp}, v{reg}")
    E(f"  s_nop 1")
    E(f"  v_permlane16_swap_b32 v{reg}, v{tmp}")
    E(f"  s_nop 1")
    E(f"  {op} v{reg}, v{reg}, v{tmp}")

def emit_step(nt, tag):
    SA, SB = V_S, V_S + 4
    E(f"  s_waitcnt vmcnt(16)")
    emit_stamp()
    for i in range(8):
        for t, sr in ((0, SA), (1, SB)):
            c = "0" if i == 0 else q4(sr)
            E(f"  v_mfma_f32_16x16x32_bf16 {q4(sr)}, {q4(kreg(t,i))}, {q4(V_Q+4*i)}, {c}")
    E(f"  s_add_u32 s{S_IDX}, s{S_IDX}, 1")
    emit_next_offsets()
    emit_k_loads(nt)
    E(f"  v_subrev_u32 v{V_T}, s{S_JA}, v{V_REM}")
    E(f"  v_subrev_u32 v{V_T+1}, s{S_JB}, v{V_REM}")
    for r in range(4):
        E(f"  v_cmp_gt_i32 s[{S_MASK+2*r}:{S_MASK+2*r+1}], v{V_T}, {r}")
    for r in range(4):
        E(f"  v_cmp_gt_i32 s[{S_MASK+8+2*r}:{S_MASK+8+2*r+1}], v{V_T+1}, {r}")
    E(f"  v_mov_b32 v{V_T+2}, 0xff800000")
    E(f"  s_nop 1")
    for r in range(8):
        E(f"  v_cndmask_b32 v{V_S+r}, v{V_T+2}, v{V_S+r}, s[{S_MASK+2*r}:{S_MASK+2*r+1}]")
    E(f"  v_max3_f32 v{V_T}, v{V_S}, v{V_S+1}, v{V_S+2}")
    E(f"  v_max3_f32 v{V_T+1}, v{V_S+3}, v{V_S+4}, v{V_S+5}")
    E(f"  v_max3_f32 v{V_T}, v{V_S+6}, v{V_S+7}, v{V_T}")
    E(f"  v_max_f32 v{V_T}, v{V_T}, v{V_T+1}")
    emit_xreduce(V_T, V_T+1, "v_max_f32")
    E(f"  v_max_f32 v{V_T}, v{V_M}, v{V_T}")
    E(f"  v_max_f32 v{V_T+1}, 0xff7fffff, v{V_T}")
    E(f"  v_mul_f32 v{V_T+1}, s{S_C}, v{V_T+1}")
    E(f"  v_fma_f32 v{V_T+2}, v{V_M}, s{S_C}, -v{V_T+1}")
    E(f"  v_exp_f32 v{V_T+2}, v{V_T+2}")
    E(f"  v_mov_b32 v{V_M}, v{V_T}")
    for r in range(8):
        E(f"  v_fma_f32 v{V_S+r}, v{V_S+r}, s{S_C}, -v{V_T+1}")
    for r in range(8):
        E(f"  v_exp_f32 v{V_S+r}, v{V_S+r}")
    E(f"  v_cmp_neq_f32 vcc, 1.0, v{V_T+2}")
    E(f"  v_mul_f32 v{V_L}, v{V_L}, v{V_T+2}")
    E(f"  v_add_f32 v{V_T+3}, v{V_S}, v{V_S+1}")
    E(f"  v_add_f32 v{V_T+4}, v{V_S+2}, v{V_S+3}")
    E(f"  v_add_f32 v{V_T+5}, v{V_S+4}, v{V_S+5}")
    E(f"  v_add_f32 v{V_T+6}, v{V_S+6}, v{V_S+7}")
    E(f"  v_add_f32 v{V_T+3}, v{V_T+3}, v{V_T+4}")
    E(f"  v_add_f32 v{V_T+5}, v{V_T+5}, v{V_T+6}")
    E(f"  v_add_f32 v{V_T+3}, v{V_T+3}, v{V_T+5}")
    E(f"  v_add_f32 v{V_L}, v{V_L}, v{V_T+3}")
    for k in range(4):
        E(f"  v_cvt_pk_bf16_f32 v{V_P+k}, v{V_S+2*k}, v{V_S+2*k+1}")
    E(f"  s_cbranch_vccz L_noscale_{tag}")
    for r in range(64):
        E(f"  v_mul_f32 v{V_O+r}, v{V_O+r}, v{V_T+2}")
    E(f"L_noscale_{tag}:")
    E(f"  s_waitcnt vmcnt(16)")
    emit_stamp()
    n = 0
    for hf in range(2):
        for jj in range(8):
            tq = V_T + (n & 1) * 4
            sel = S_SELHI if (jj & 1) else S_SELLO
            w = jj >> 1
            for t in range(2):
                for pp in range(2):
                    lo = vreg(t, 2*pp, hf) + w
                    hi = vreg(t, 2*pp+1, hf) + w
                    E(f"  v_perm_b32 v{tq + t*2 + pp}, v{hi}, v{lo}, s{sel}")
            E(f"  s_nop 1")
            E(f"  v_mfma_f32_16x16x32_bf16 {q4(oreg(hf,jj))}, {q4(tq)}, {q4(V_P)}, {q4(oreg(hf,jj))}")
            n += 1
    emit_v_loads(nt)
    E(f"  s_mov_b32 s{S_JA}, s{S_NJA}")
    E(f"  s_mov_b32 s{S_JB}, s{S_NJB}")

def main_kernel():
    E(f".globl {NAME}_kernel")
    E(f".p2align 8")
    E(f".type {NAME}_kernel,@function")
    E(f"{NAME}_kernel:")
    E(f"  s_cmp_ge_u32 s2, {NWG}")
    E(f"  s_cbranch_scc1 L_main_end")
    if STAMP:
        E(f"  s_mov_b32 s98, 0")
        E(f"  v_mov_b32 v252, 0")
    emit_stamp()
    E(f"  s_load_dwordx16 s[{S_ARG}:{S_ARG+15}], s[0:1], 0")
    VL, VCOL, VG, VBL = 8, 9, 10, 11
    E(f"  v_and_b32 v{VL}, 63, v0")
    E(f"  v_lshrrev_b32 v12, 6, v0")
    E(f"  v_and_b32 v{VCOL}, 15, v0")
    E(f"  v_readfirstlane_b32 s{S_W}, v12")
    E(f"  v_lshrrev_b32 v{VG}, 4, v{VL}")
    E(f"  s_and_b32 s{S_KVH}, s2, 7")
    E(f"  s_lshl_b32 s{S_KVHOFF}, s{S_KVH}, 9")
    E(f"  s_lshr_b32 s{S_B}, s2, 3")
    E(f"  s_mov_b32 s{S_C}, {f2u(C_SCALE):#x}")
    E(f"  s_mov_b32 s{S_SELLO}, 0x05040100")
    E(f"  s_mov_b32 s{S_SELHI}, 0x07060302")
    E(f"  s_cmp_eq_u32 s{S_W}, {NPW}")
    E(f"  s_cselect_b32 s{S_SH}, 1, 0")
    E(f"  s_cbranch_scc1 L_pro_shared")
    E(f"  v_mov_b32 v{VBL}, s{S_B}")
    E(f"  s_lshl_b32 s{S_T0}, s{S_B}, 2")
    E(f"  s_lshl_b32 s{S_T1}, s{S_B}, 9")
    E(f"  s_mov_b32 s{S_PART}, s{S_W}")
    E(f"  s_mov_b32 s{S_SLOT}, 0")
    E(f"  s_mov_b32 s{S_LIST}, 0")
    E(f"  s_waitcnt lgkmcnt(0)")
    E(f"  s_load_dword s{S_CTX8}, s[24:25], s{S_T0}")
    E(f"  s_branch L_pro_common")
    E(f"L_pro_shared:")
    E(f"  s_lshr_b32 s{S_PART}, s{S_B}, 2")
    E(f"  s_and_b32 s{S_BQ}, s{S_B}, 3")
    E(f"  s_add_u32 s{S_SLOT}, s{S_PART}, 1")
    E(f"  s_mov_b32 s{S_LIST}, 1024")
    E(f"  v_lshrrev_b32 v{VBL}, 1, v{VCOL}")
    E(f"  s_lshl_b32 s{S_T0}, s{S_BQ}, 3")
    E(f"  v_add_u32 v{VBL}, s{S_T0}, v{VBL}")
    E(f"  s_lshl_b32 s{S_T0}, s{S_BQ}, 5")
    E(f"  s_mov_b32 s{S_T1}, 0")
    E(f"  s_waitcnt lgkmcnt(0)")
    E(f"  s_load_dwordx8 s[{S_CTX8}:{S_CTX8+7}], s[24:25], s{S_T0}")
    E(f"L_pro_common:")
    for srd, lo, nb in ((S_KSRD, 18, KV_BYTES), (S_VSRD, 20, KV_BYTES), (S_XSRD, 22, 16384)):
        E(f"  s_mov_b32 s{srd}, s{lo}")
        E(f"  s_and_b32 s{srd+1}, s{lo+1}, 0xffff")
        E(f"  s_mov_b32 s{srd+2}, {nb}")
        E(f"  s_mov_b32 s{srd+3}, 0x00020000")
    E(f"  v_and_b32 v12, 31, v{VL}")
    E(f"  v_lshlrev_b32 v12, 4, v12")
    E(f"  v_lshrrev_b32 v13, 5, v{VL}")
    E(f"  v_lshl_add_u32 v13, v13, 9, v12")
    TB = V_K; R0 = V_K + 64; OWN = V_K + 68
    E(f"  s_mov_b32 s{S_T2}, 4096")
    E(f"  s_mov_b32 s{S_T3}, 8192")
    E(f"  s_mov_b32 s{S_BASE}, 12288")
    so = ["0", f"s{S_T2}", f"s{S_T3}", f"s{S_BASE}"]
    E(f"  buffer_load_dwordx4 {q4(R0)}, v12, s[{S_XSRD}:{S_XSRD+3}], 0 offen")
    E(f"  buffer_load_dwordx4 {q4(OWN)}, v12, s[{S_XSRD}:{S_XSRD+3}], s{S_T1} offen")
    for i in range(16):
        E(f"  buffer_load_dwordx4 {q4(TB+4*i)}, v13, s[{S_XSRD}:{S_XSRD+3}], {so[i>>2]} offen offset:{(i&3)*1024}")
    E(f"  v_lshlrev_b32 v14, 2, v{VBL}")
    E(f"  global_load_dword v{V_REM}, v14, s[24:25]")
    E(f"  v_and_b32 v14, 1, v{VCOL}")
    E(f"  v_lshl_add_u32 v14, v{VBL}, 4, v14")
    E(f"  s_lshl_b32 s{S_T0}, s{S_KVH}, 1")
    E(f"  v_add_u32 v14, s{S_T0}, v14")
    E(f"  v_lshlrev_b32 v15, 9, v14")
    E(f"  v_lshl_add_u32 v15, v{VG}, 4, v15")
    for i in range(8):
        E(f"  global_load_dwordx4 {q4(V_Q+4*i)}, v15, s[16:17] offset:{i*64}")
    E(f"  v_lshlrev_b32 v{V_KOFF}, 12, v{VCOL}")
    E(f"  v_lshl_add_u32 v{V_KOFF}, v{VG}, 4, v{V_KOFF}")
    E(f"  v_lshlrev_b32 v{V_VOFF}, 14, v{VG}")
    E(f"  v_lshl_add_u32 v{V_VOFF}, v{VCOL}, 4, v{V_VOFF}")
    E(f"  v_mov_b32 v{V_M}, 0xff800000")
    E(f"  v_mov_b32 v{V_L}, 0")
    for r in range(64):
        E(f"  v_mov_b32 v{V_O+r}, 0")
    E(f"  s_waitcnt lgkmcnt(0)")
    E(f"  s_cmp_eq_u32 s{S_SH}, 0")
    E(f"  s_cbranch_scc1 L_pro_nomax")
    for k in range(1, 8):
        E(f"  s_max_i32 s{S_CTX8}, s{S_CTX8}, s{S_CTX8+k}")
    E(f"L_pro_nomax:")
    E(f"  s_max_i32 s{S_CTX8}, s{S_CTX8}, 0")
    E(f"  s_min_i32 s{S_CTX8}, s{S_CTX8}, 2048")
    E(f"  s_add_u32 s{S_CTX8}, s{S_CTX8}, 15")
    E(f"  s_lshr_b32 s{S_CTX8}, s{S_CTX8}, 4")
    E(f"  s_waitcnt vmcnt(9)")
    for c in range(4):
        E(f"  v_xor_b32 v{12+c}, v{TB+c}, v{R0+c}")
        for i in range(1, 16):
            E(f"  v_xor_b32 v{TB+4*i+c}, v{TB+4*i+c}, v{R0+c}")
        for i in range(1, 16, 2):
            if i + 1 < 16: E(f"  v_or3_b32 v{12+c}, v{12+c}, v{TB+4*i+c}, v{TB+4*(i+1)+c}")
            else: E(f"  v_or_b32 v{12+c}, v{12+c}, v{TB+4*i+c}")
    E(f"  v_and_b32 v{TB}, 31, v{VL}")
    E(f"  v_lshlrev_b32 v{TB}, 2, v{TB}")
    for c in range(4):
        E(f"  v_cmp_ne_u32 s[{S_MASK+2*c}:{S_MASK+2*c+1}], 0, v{12+c}")
    for c in range(4):
        E(f"  v_add_u32 v{TB+1+c}, {c}, v{TB}")
        E(f"  v_cmp_gt_u32 s[{S_MASK+8+2*c}:{S_MASK+8+2*c+1}], s{S_CTX8}, v{TB+1+c}")
    E(f"  s_nop 3")
    E(f"  s_cmp_eq_u32 s{S_SH}, 1")
    E(f"  s_cselect_b32 s{S_T0}, -1, 0")
    for c in range(4):
        E(f"  s_or_b32 s{S_TK+c}, s{S_MASK+2*c}, s{S_MASK+2*c+1}")
        E(f"  s_xor_b32 s{S_TK+c}, s{S_TK+c}, s{S_T0}")
        E(f"  s_and_b32 s{S_TK+c}, s{S_TK+c}, s{S_MASK+8+2*c}")
    E(f"  s_mov_b32 s{S_N}, 0")
    for c in range(4):
        E(f"  v_mbcnt_lo_u32_b32 v12, s{S_TK+c}, 0")
        E(f"  v_add_u32 v12, s{S_N}, v12")
        E(f"  v_lshlrev_b32 v12, 3, v12")
        E(f"  v_add_u32 v12, s{S_LIST}, v12")
        E(f"  v_mov_b32 v14, v{OWN+c}")
        E(f"  v_lshlrev_b32 v15, 4, v{TB+1+c}")
        E(f"  s_mov_b32 exec_lo, s{S_TK+c}")
        E(f"  s_mov_b32 exec_hi, 0")
        E(f"  ds_write_b64 v12, v[14:15]")
        E(f"  s_mov_b64 exec, -1")
        E(f"  s_bcnt1_i32_b32 s{S_T0}, s{S_TK+c}")
        E(f"  s_add_u32 s{S_N}, s{S_N}, s{S_T0}")
    E(f"  s_add_u32 s{S_T0}, s{S_N}, 1")
    E(f"  s_lshr_b32 s{S_T0}, s{S_T0}, 1")
    E(f"  s_cmp_eq_u32 s{S_SH}, 1")
    E(f"  s_cselect_b32 s{S_T1}, 32, 37")
    E(f"  s_cselect_b32 s{S_T2}, {SH_PARTS}, {NPW}")
    E(f"  s_mul_i32 s{S_T1}, s{S_T0}, s{S_T1}")
    E(f"  s_lshr_b32 s{S_T1}, s{S_T1}, 8")
    E(f"  s_mul_i32 s{S_T2}, s{S_T1}, s{S_T2}")
    E(f"  s_sub_u32 s{S_T2}, s{S_T0}, s{S_T2}")
    E(f"  s_mul_i32 s{S_T3}, s{S_PART}, s{S_T1}")
    E(f"  s_min_u32 s{S_BASE}, s{S_PART}, s{S_T2}")
    E(f"  s_add_u32 s{S_T3}, s{S_T3}, s{S_BASE}")
    E(f"  s_cmp_lt_u32 s{S_PART}, s{S_T2}")
    E(f"  s_cselect_b32 s{S_BASE}, 1, 0")
    E(f"  s_add_u32 s{S_NSTEP}, s{S_T1}, s{S_BASE}")
    E(f"  s_lshl_b32 s{S_T3}, s{S_T3}, 1")
    E(f"  v_add_u32 v12, s{S_T3}, v{VL}")
    E(f"  v_lshlrev_b32 v13, 3, v12")
    E(f"  v_and_b32 v13, 0x3ff, v13")
    E(f"  v_add_u32 v13, s{S_LIST}, v13")
    E(f"  s_waitcnt lgkmcnt(0)")
    E(f"  ds_read_b64 v[14:15], v13")
    E(f"  v_cmp_gt_u32 vcc, s{S_N}, v12")
    E(f"  v_mov_b32 v13, 0x100000")
    E(f"  v_mov_b32 v12, 2112")
    E(f"  s_waitcnt lgkmcnt(0)")
    E(f"  v_cndmask_b32 v{V_PHYS}, v12, v14, vcc")
    E(f"  v_cndmask_b32 v{V_J16}, v13, v15, vcc")
    E(f"  s_mov_b32 s{S_IDX}, 0")
    E(f"  s_cmp_eq_u32 s{S_NSTEP}, 0")
    E(f"  s_cbranch_scc1 L_epilogue")
    E(f"  s_cmp_eq_u32 s{S_SH}, 1")
    E(f"  s_cbranch_scc1 L_path_sh")
    for tag, nt in (("pr", " nt"), ("sh", "")):
        E(f"L_path_{tag}:")
        emit_next_offsets()
        emit_k_loads(nt)
        emit_v_loads(nt)
        E(f"  s_mov_b32 s{S_JA}, s{S_NJA}")
        E(f"  s_mov_b32 s{S_JB}, s{S_NJB}")
        E(f"  s_waitcnt vmcnt(32)")
        E(f"  v_lshlrev_b32 v12, 2, v{VG}")
        E(f"  v_max_i32 v{V_REM}, 0, v{V_REM}")
        E(f"  v_min_i32 v{V_REM}, 2048, v{V_REM}")
        E(f"  v_sub_u32 v{V_REM}, v{V_REM}, v12")
        emit_stamp()
        E(f"L_loop_{tag}:")
        emit_step(nt, tag)
        E(f"  s_cmp_lt_u32 s{S_IDX}, s{S_NSTEP}")
        E(f"  s_cbranch_scc1 L_loop_{tag}")
        if tag == "pr":
            E(f"  s_branch L_epilogue")
    E(f"L_epilogue:")
    E(f"  s_waitcnt vmcnt(0)")
    E(f"  s_nop 15")
    emit_xreduce(V_L, V_T, "v_add_f32")
    E(f"  v_and_b32 v{VL}, 63, v0")
    E(f"  v_and_b32 v{VCOL}, 15, v0")
    E(f"  v_lshrrev_b32 v{VG}, 4, v{VL}")
    E(f"  s_mov_b32 s{S_XSRD}, s30")
    E(f"  s_and_b32 s{S_XSRD+1}, s31, 0xffff")
    E(f"  s_mov_b32 s{S_XSRD+2}, {WS_BYTES}")
    E(f"  s_mov_b32 s{S_XSRD+3}, 0x00020000")
    lgs = NSLOT.bit_length() - 1
    E(f"  s_cmp_eq_u32 s{S_SH}, 1")
    E(f"  s_cbranch_scc1 L_epi_sh")
    E(f"  v_lshlrev_b32 v12, 2, v0")
    E(f"  v_lshlrev_b32 v13, 2, v{VL}")
    E(f"  ds_write_b32 v12, v{V_M} offset:{LDS_M}")
    E(f"  s_waitcnt lgkmcnt(0)")
    E(f"  s_barrier")
    for w in range(NPW):
        E(f"  ds_read_b32 v{V_S+w}, v13 offset:{LDS_M + w*256}")
    E(f"  s_waitcnt lgkmcnt(0)")
    E(f"  v_max3_f32 v14, v{V_S}, v{V_S+1}, v{V_S+2}")
    E(f"  v_max3_f32 v14, v14, v{V_S+3}, v{V_S+4}")
    E(f"  v_max3_f32 v14, v14, v{V_S+5}, v{V_S+6}")
    E(f"  v_max_f32 v15, 0xff7fffff, v14")
    E(f"  v_mul_f32 v15, s{S_C}, v15")
    E(f"  v_fma_f32 v15, v{V_M}, s{S_C}, -v15")
    E(f"  v_exp_f32 v15, v15")
    E(f"  s_nop 0")
    E(f"  v_mul_f32 v{V_L}, v{V_L}, v15")
    for r in range(64):
        E(f"  v_mul_f32 v{V_O+r}, v{V_O+r}, v15")
    E(f"  ds_write_b32 v12, v{V_L} offset:{LDS_L}")
    E(f"  s_lshl_b32 s{S_T0}, s{S_W}, 11")
    E(f"  v_lshl_add_u32 v15, v{VG}, 1, v{VCOL}")
    E(f"  v_lshlrev_b32 v15, 4, v15")
    E(f"  v_add_u32 v15, s{S_T0}, v15")
    E(f"  v_cmp_gt_u32 vcc, 2, v{VCOL}")
    E(f"  s_nop 4")
    E(f"  s_mov_b64 exec, vcc")
    for qd in range(16):
        E(f"  ds_write_b128 v15, {q4(V_O+4*qd)} offset:{LDS_O + qd*128}")
    E(f"  s_mov_b64 exec, -1")
    E(f"  s_waitcnt lgkmcnt(0)")
    E(f"  s_barrier")
    E(f"  v_lshlrev_b32 v12, 2, v0")
    for w in range(NPW):
        E(f"  ds_read_b32 v{V_S+w}, v12 offset:{LDS_O + w*2048}")
    E(f"  s_cmp_lg_u32 s{S_W}, 0")
    E(f"  s_cbranch_scc1 L_epi_pr1")
    for w in range(NPW):
        E(f"  ds_read_b32 v{V_K+w}, v12 offset:{LDS_O + w*2048 + 448*4}")
    for w in range(NPW):
        E(f"  ds_read_b32 v{V_K+8+w}, v13 offset:{LDS_L + w*256}")
    E(f"L_epi_pr1:")
    def addr(tv, dst):
        E(f"  v_lshrrev_b32 v{V_V}, 5, v{tv}")
        E(f"  v_bfe_u32 v{V_V+1}, v{tv}, 2, 3")
        E(f"  v_and_b32 v{V_V+2}, 3, v{tv}")
        E(f"  v_lshrrev_b32 v{V_V+3}, 3, v{V_V}")
        E(f"  v_lshlrev_b32 v{V_V+3}, 7, v{V_V+3}")
        E(f"  v_and_b32 v{V_V}, 7, v{V_V}")
        E(f"  v_add_u32 v{V_V+3}, v{V_V+3}, v{V_V}")
        E(f"  v_lshl_add_u32 v{V_V+3}, v{V_V+2}, 3, v{V_V+3}")
        E(f"  v_lshrrev_b32 v{V_V}, 1, v{V_V+1}")
        E(f"  v_lshl_add_u32 v{V_V+3}, v{V_V}, 5, v{V_V+3}")
        E(f"  v_and_b32 v{V_V+1}, 1, v{V_V+1}")
        E(f"  v_add_u32 v{V_V+1}, s{S_T1}, v{V_V+1}")
        E(f"  v_lshlrev_b32 v{V_V+1}, {lgs+10}, v{V_V+1}")
        E(f"  v_lshl_add_u32 v{dst}, v{V_V+3}, 2, v{V_V+1}")
    E(f"  s_lshl_b32 s{S_T1}, s{S_B}, 4")
    E(f"  s_lshl_b32 s{S_T0}, s{S_KVH}, 1")
    E(f"  s_add_u32 s{S_T1}, s{S_T1}, s{S_T0}")
    addr(0, V_V+4)
    E(f"  s_waitcnt lgkmcnt(0)")
    E(f"  v_add_f32 v{V_S}, v{V_S}, v{V_S+1}")
    E(f"  v_add_f32 v{V_S+2}, v{V_S+2}, v{V_S+3}")
    E(f"  v_add_f32 v{V_S+4}, v{V_S+4}, v{V_S+5}")
    E(f"  v_add_f32 v{V_S}, v{V_S}, v{V_S+2}")
    E(f"  v_add_f32 v{V_S+4}, v{V_S+4}, v{V_S+6}")
    E(f"  v_add_f32 v{V_S}, v{V_S}, v{V_S+4}")
    E(f"  buffer_store_dword v{V_S}, v{V_V+4}, s[{S_XSRD}:{S_XSRD+3}], 0 offen")
    E(f"  s_cmp_lg_u32 s{S_W}, 0")
    E(f"  s_cbranch_scc1 L_epi_done")
    E(f"  v_add_u32 v12, 448, v{VL}")
    addr(12, V_V+5)
    E(f"  v_add_f32 v{V_K}, v{V_K}, v{V_K+1}")
    E(f"  v_add_f32 v{V_K+2}, v{V_K+2}, v{V_K+3}")
    E(f"  v_add_f32 v{V_K+4}, v{V_K+4}, v{V_K+5}")
    E(f"  v_add_f32 v{V_K}, v{V_K}, v{V_K+2}")
    E(f"  v_add_f32 v{V_K+4}, v{V_K+4}, v{V_K+6}")
    E(f"  v_add_f32 v{V_K}, v{V_K}, v{V_K+4}")
    E(f"  buffer_store_dword v{V_K}, v{V_V+5}, s[{S_XSRD}:{S_XSRD+3}], 0 offen")
    E(f"  v_add_f32 v{V_K+8}, v{V_K+8}, v{V_K+9}")
    E(f"  v_add_f32 v{V_K+10}, v{V_K+10}, v{V_K+11}")
    E(f"  v_add_f32 v{V_K+12}, v{V_K+12}, v{V_K+13}")
    E(f"  v_add_f32 v{V_K+8}, v{V_K+8}, v{V_K+10}")
    E(f"  v_add_f32 v{V_K+12}, v{V_K+12}, v{V_K+14}")
    E(f"  v_add_f32 v15, v{V_K+8}, v{V_K+12}")
    E(f"  v_add_u32 v12, s{S_T1}, v{VL}")
    E(f"  v_lshlrev_b32 v12, {lgs+3}, v12")
    E(f"  v_add_u32 v12, {WS_ML_OFF}, v12")
    E(f"  s_mov_b64 exec, 3")
    E(f"  buffer_store_dwordx2 v[14:15], v12, s[{S_XSRD}:{S_XSRD+3}], 0 offen")
    E(f"  s_branch L_epi_done")
    E(f"L_epi_sh:")
    E(f"  v_lshrrev_b32 v{VBL}, 1, v{VCOL}")
    E(f"  s_lshl_b32 s{S_T0}, s{S_BQ}, 3")
    E(f"  v_add_u32 v{VBL}, s{S_T0}, v{VBL}")
    E(f"  v_and_b32 v14, 1, v{VCOL}")
    E(f"  v_lshl_add_u32 v14, v{VBL}, 4, v14")
    E(f"  s_lshl_b32 s{S_T0}, s{S_KVH}, 1")
    E(f"  v_add_u32 v14, s{S_T0}, v14")
    E(f"  v_lshlrev_b32 v14, {lgs}, v14")
    E(f"  v_add_u32 v14, s{S_SLOT}, v14")
    E(f"  v_lshlrev_b32 v15, 10, v14")
    E(f"  v_lshl_add_u32 v15, v{VG}, 7, v15")
    E(f"  v_lshlrev_b32 v14, 3, v14")
    E(f"  v_add_u32 v14, {WS_ML_OFF}, v14")
    for hf in range(2):
        for r in range(4):
            base = V_K + (hf*4 + r) * 8
            for jj in range(8):
                E(f"  v_mov_b32 v{base+jj}, v{oreg(hf,jj)+r}")
    for hf in range(2):
        for r in range(4):
            base = V_K + (hf*4 + r) * 8
            for half in range(2):
                E(f"  buffer_store_dwordx4 {q4(base+4*half)}, v15, s[{S_XSRD}:{S_XSRD+3}], 0 offen offset:{hf*512 + r*32 + half*16}")
    E(f"  v_mov_b32 v12, v{V_M}")
    E(f"  v_mov_b32 v13, v{V_L}")
    E(f"  s_mov_b64 exec, 0xffff")
    E(f"  buffer_store_dwordx2 v[12:13], v14, s[{S_XSRD}:{S_XSRD+3}], 0 offen")
    E(f"  s_mov_b64 exec, -1")
    E(f"  s_barrier")
    E(f"  s_barrier")
    E(f"L_epi_done:")
    if STAMP:
        emit_stamp()
        E(f"  s_mov_b64 exec, -1")
        E(f"  s_lshl_b32 s99, s2, 3")
        E(f"  s_add_u32 s99, s99, s{S_W}")
        E(f"  s_lshl_b32 s99, s99, 8")
        E(f"  s_add_u32 s99, s99, 0xa00000")
        E(f"  v_and_b32 v253, 63, v0")
        E(f"  v_lshlrev_b32 v253, 2, v253")
        E(f"  v_add_u32 v253, s99, v253")
        E(f"  global_store_dword v253, v252, s[30:31]")
    E(f"L_main_end:")
    E(f"  s_endpgm")

def combine_kernel():
    MASKRAW = -998244352.0 * 16.0
    E(f".globl combine_kernel")
    E(f".p2align 8")
    E(f".type combine_kernel,@function")
    E(f"combine_kernel:")
    E(f"  s_cmp_ge_u32 s2, 128")
    E(f"  s_cbranch_scc1 L_cmb_end")
    E(f"  s_load_dwordx16 s[16:31], s[0:1], 0")
    E(f"  v_lshrrev_b32 v1, 6, v0")
    E(f"  v_and_b32 v2, 63, v0")
    E(f"  s_nop 0")
    E(f"  v_readfirstlane_b32 s3, v1")
    E(f"  s_lshl_b32 s4, s2, 2")
    E(f"  s_nop 2")
    E(f"  s_add_u32 s4, s4, s3")
    E(f"  s_mov_b32 s56, {f2u(C_SCALE):#x}")
    E(f"  s_waitcnt lgkmcnt(0)")
    E(f"  s_lshl_b32 s5, s4, {(NSLOT*8).bit_length()-1}")
    E(f"  s_add_u32 s5, s5, {WS_ML_OFF}")
    E(f"  s_load_dwordx16 s[32:47], s[30:31], s5")
    E(f"  s_add_u32 s5, s5, 64")
    E(f"  s_load_dwordx2 s[48:49], s[30:31], s5")
    E(f"  s_lshr_b32 s6, s4, 4")
    E(f"  s_lshl_b32 s7, s6, 2")
    E(f"  s_load_dword s52, s[24:25], s7")
    E(f"  s_mov_b32 s8, s30")
    E(f"  s_and_b32 s9, s31, 0xffff")
    E(f"  s_mov_b32 s10, {WS_BYTES}")
    E(f"  s_mov_b32 s11, 0x00020000")
    E(f"  s_lshl_b32 s12, s4, {10 + NSLOT.bit_length()-1}")
    E(f"  s_add_u32 s13, s12, 4096")
    E(f"  s_add_u32 s14, s12, 8192")
    E(f"  v_lshlrev_b32 v3, 4, v2")
    for s in range(NUSED):
        E(f"  buffer_load_dwordx4 v[{8+4*s}:{11+4*s}], v3, s[8:11], s{12 + (s>>2)} offen offset:{(s&3)*1024}")
    E(f"  s_waitcnt lgkmcnt(0)")
    E(f"  v_mov_b32 v4, s32")
    for s in range(1, NUSED):
        E(f"  v_max_f32 v4, s{32+2*s}, v4")
    E(f"  s_max_i32 s52, s52, 0")
    E(f"  s_min_i32 s52, s52, 2048")
    E(f"  s_sub_u32 s53, 2048, s52")
    E(f"  s_mov_b32 s54, 0")
    E(f"  s_cmp_eq_u32 s53, 0")
    E(f"  s_cbranch_scc1 L_cmb_fast")
    E(f"  v_cmp_gt_f32 vcc, {f2u(MASKRAW + 2048.0):#x}, v4")
    E(f"  s_nop 4")
    E(f"  s_cbranch_vccz L_cmb_fast")
    E(f"  s_mov_b32 s54, 1")
    E(f"  v_max_f32 v4, {f2u(MASKRAW):#x}, v4")
    E(f"L_cmb_fast:")
    E(f"  v_max_f32 v4, 0xff7fffff, v4")
    E(f"  v_mul_f32 v5, s56, v4")
    E(f"  v_mov_b32 v6, 0")
    A = 48
    for k in range(4):
        E(f"  v_mov_b32 v{A+k}, 0")
    E(f"  s_waitcnt vmcnt(0)")
    for s in range(NUSED):
        E(f"  v_mov_b32 v7, s{32+2*s}")
        E(f"  v_fma_f32 v7, v7, s56, -v5")
        E(f"  v_exp_f32 v7, v7")
        E(f"  s_nop 0")
        E(f"  v_fma_f32 v6, v7, s{33+2*s}, v6")
        for k in range(4):
            E(f"  v_fma_f32 v{A+k}, v7, v{8+4*s+k}, v{A+k}")
    E(f"  s_cmp_eq_u32 s54, 0")
    E(f"  s_cbranch_scc1 L_cmb_out")
    E(f"  v_mov_b32 v7, {f2u(MASKRAW):#x}")
    E(f"  v_fma_f32 v7, v7, s56, -v5")
    E(f"  v_exp_f32 v7, v7")
    E(f"  v_cvt_f32_u32 v52, s53")
    E(f"  v_fma_f32 v6, v7, v52, v6")
    E(f"  s_mov_b32 s8, s20")
    E(f"  s_and_b32 s9, s21, 0xffff")
    E(f"  s_mov_b32 s10, {KV_BYTES}")
    E(f"  s_mov_b32 s11, 0x00020000")
    E(f"  s_and_b32 s13, s4, 15")
    E(f"  s_lshr_b32 s13, s13, 1")
    E(f"  s_lshl_b32 s13, s13, 9")
    E(f"  v_lshlrev_b32 v3, 3, v2")
    for k in range(4):
        E(f"  v_mov_b32 v{54+k}, 0")
    E(f"L_cmb_slow:")
    E(f"  s_lshr_b32 s14, s52, 4")
    E(f"  s_lshl_b32 s14, s14, 2")
    E(f"  s_lshl_b32 s15, s6, 9")
    E(f"  s_add_u32 s14, s14, s15")
    E(f"  s_load_dword s15, s[22:23], s14")
    E(f"  s_waitcnt lgkmcnt(0)")
    E(f"  s_lshl_b32 s15, s15, 16")
    E(f"  s_and_b32 s14, s52, 15")
    E(f"  s_lshl_b32 s14, s14, 12")
    E(f"  s_add_u32 s15, s15, s14")
    E(f"  s_add_u32 s15, s15, s13")
    E(f"  buffer_load_dwordx2 v[58:59], v3, s[8:11], s15 offen")
    E(f"  s_waitcnt vmcnt(0)")
    E(f"  v_lshlrev_b32 v60, 16, v58")
    E(f"  v_and_b32 v61, 0xffff0000, v58")
    E(f"  v_lshlrev_b32 v62, 16, v59")
    E(f"  v_and_b32 v63, 0xffff0000, v59")
    for k in range(4):
        E(f"  v_add_f32 v{54+k}, v{54+k}, v{60+k}")
    E(f"  s_add_u32 s52, s52, 1")
    E(f"  s_cmp_lt_u32 s52, 2048")
    E(f"  s_cbranch_scc1 L_cmb_slow")
    for k in range(4):
        E(f"  v_fma_f32 v{A+k}, v7, v{54+k}, v{A+k}")
    E(f"L_cmb_out:")
    E(f"  v_rcp_f32 v6, v6")
    E(f"  s_nop 0")
    for k in range(4):
        E(f"  v_mul_f32 v{A+k}, v{A+k}, v6")
    E(f"  v_cvt_pk_bf16_f32 v52, v{A}, v{A+1}")
    E(f"  v_cvt_pk_bf16_f32 v53, v{A+2}, v{A+3}")
    E(f"  s_mov_b32 s8, s26")
    E(f"  s_and_b32 s9, s27, 0xffff")
    E(f"  s_mov_b32 s10, {512*512}")
    E(f"  s_mov_b32 s11, 0x00020000")
    E(f"  s_lshl_b32 s12, s4, 9")
    E(f"  v_lshlrev_b32 v3, 3, v2")
    E(f"  buffer_store_dwordx2 v[52:53], v3, s[8:11], s12 offen")
    E(f"L_cmb_end:")
    E(f"  s_endpgm")

def kd(name, vgpr, sgpr):
    E(f".amdhsa_kernel {name}")
    E(f"  .amdhsa_next_free_vgpr {vgpr}")
    E(f"  .amdhsa_next_free_sgpr {sgpr}")
    E(f"  .amdhsa_accum_offset {(vgpr+3)//4*4}")
    E(f"  .amdhsa_group_segment_fixed_size 0")
    E(f"  .amdhsa_kernarg_size 64")
    E(f"  .amdhsa_user_sgpr_count 2")
    E(f"  .amdhsa_user_sgpr_kernarg_segment_ptr 1")
    E(f"  .amdhsa_system_sgpr_workgroup_id_x 1")
    E(f"  .amdhsa_float_denorm_mode_32 3")
    E(f".end_amdhsa_kernel")

hdr = open("cdna_kernels/" + NAME + ".s.ref").read().split("; Override launch")[0]
E(hdr.rstrip())
E(f"; @launch kernel={NAME}_kernel grid=({NWG},1,1) block=({NW*64},1,1) lds={LDS_BYTES}")
E(f"; @launch kernel=combine_kernel grid=(128,1,1) block=(256,1,1) lds=0")
E('.amdgcn_target "amdgcn-amd-amdhsa--gfx950"')
E(".text")
main_kernel()
combine_kernel()
E('.section .rodata,"a"')
E(".p2align 6")
kd(f"{NAME}_kernel", V_END, S_END)
E(".p2align 6")
kd("combine_kernel", 64, 60)
open(sys.argv[1] if len(sys.argv) > 1 else "cdna_kernels/" + NAME + ".s", "w").write("\n".join(out) + "\n")
```

```python
import sys, os, struct
STAMP = int(os.environ.get('STAMP', '0'))
NAME = "standalone__paged_block_table_kv_radixattention__sampling"
NW = 8
NPW = 7
NWG = 256
SH_PARTS = 8
NSLOT = 16
NUSED = 10
WS_O_BYTES = 512 * NSLOT * 1024
WS_ML_OFF = WS_O_BYTES
WS_BYTES = WS_O_BYTES + 512 * NSLOT * 8
KV_BYTES = 2112 * 65536
C_SCALE = 0.0625 * 1.4426950408889634
LDS_LIST = 0
LDS_M = 3072
LDS_L = 5120
LDS_KEY = 7168
LDS_O = 7424
LDS_BYTES = LDS_O + NPW * 2048

def f2u(f):
    return struct.unpack("<I", struct.pack("<f", f))[0]
out = []
def E(s=""):
    out.append(s)

V_KOFF, V_VOFF, V_PHYS, V_J16, V_REM, V_M, V_L = 1, 2, 3, 4, 5, 6, 7
V_T = 8; V_S = 16; V_P = 24; V_Q = 28; V_O = 60; V_K = 124; V_V = 188
V_END = 256 if STAMP else 252
S_KSRD, S_VSRD, S_XSRD = 4, 8, 12
S_ARG = 16
S_W, S_KVH, S_SH, S_BQ, S_KVHOFF = 32, 33, 34, 35, 36
S_NSTEP, S_IDX, S_JA, S_JB = 37, 38, 39, 40
S_OFFA, S_OFFB = 41, 42
S_B = 43
S_VO = 44
S_C, S_SELLO, S_SELHI = 52, 53, 54
S_T0, S_T1, S_T2, S_T3 = 55, 56, 57, 58
S_LIST = 59
S_MASK = 60
S_CTX8 = 76
S_NJA, S_NJB, S_N = 84, 85, 86
S_TK = 88
S_BASE, S_PART, S_SLOT = 92, 93, 94
S_BL, S_BS, S_W1, S_HALF, S_P, S_N1, S_N2, S_ST = 76, 77, 78, 79, 80, 81, 82, 83
S_NB, S_STRIDE = 87, 95
S_END = 102 if STAMP else 96

def kreg(tile, i): return V_K + tile * 32 + i * 4
def vreg(tile, e, hf): return V_V + ((tile * 4 + e) * 2 + hf) * 4
def oreg(hf, jj): return V_O + (hf * 8 + jj) * 4
def q4(r): return f"v[{r}:{r+3}]"

def emit_stamp():
    if not STAMP: return
    E(f"  s_memrealtime s[96:97]")
    E(f"  s_waitcnt lgkmcnt(0)")
    E(f"  s_mov_b32 m0, s98")
    E(f"  s_nop 0")
    E(f"  v_writelane_b32 v252, s96, m0")
    E(f"  s_add_u32 s98, s98, 1")
    E(f"  s_and_b32 s98, s98, 63")

def emit_next_offsets():
    E(f"  s_lshl_b32 s{S_T0}, s{S_IDX}, 1")
    E(f"  s_and_b32 s{S_T0}, s{S_T0}, 63")
    E(f"  s_add_u32 s{S_T1}, s{S_T0}, 1")
    E(f"  v_readlane_b32 s{S_OFFA}, v{V_PHYS}, s{S_T0}")
    E(f"  v_readlane_b32 s{S_OFFB}, v{V_PHYS}, s{S_T1}")
    E(f"  v_readlane_b32 s{S_NJA}, v{V_J16}, s{S_T0}")
    E(f"  v_readlane_b32 s{S_NJB}, v{V_J16}, s{S_T1}")
    E(f"  s_cmp_lt_u32 s{S_IDX}, s{S_NSTEP}")
    E(f"  s_nop 2")
    E(f"  s_cselect_b32 s{S_OFFA}, s{S_OFFA}, 2112")
    E(f"  s_cselect_b32 s{S_OFFB}, s{S_OFFB}, 2112")
    E(f"  s_lshl_b32 s{S_OFFA}, s{S_OFFA}, 16")
    E(f"  s_lshl_b32 s{S_OFFB}, s{S_OFFB}, 16")
    E(f"  s_add_u32 s{S_OFFA}, s{S_OFFA}, s{S_KVHOFF}")
    E(f"  s_add_u32 s{S_OFFB}, s{S_OFFB}, s{S_KVHOFF}")
    for t, so in ((0, S_OFFA), (1, S_OFFB)):
        for e in range(4):
            if e == 0: E(f"  s_mov_b32 s{S_VO + t*4}, s{so}")
            else: E(f"  s_add_u32 s{S_VO + t*4 + e}, s{so}, {e*4096}")

def emit_k_loads(nt):
    for t, so in ((0, S_OFFA), (1, S_OFFB)):
        for i in range(8):
            E(f"  buffer_load_dwordx4 {q4(kreg(t,i))}, v{V_KOFF}, s[{S_KSRD}:{S_KSRD+3}], s{so} offen offset:{i*64}{nt}")

def emit_v_loads(nt):
    for t in range(2):
        for e in range(4):
            for hf in range(2):
                E(f"  buffer_load_dwordx4 {q4(vreg(t,e,hf))}, v{V_VOFF}, s[{S_VSRD}:{S_VSRD+3}], s{S_VO+t*4+e} offen offset:{hf*256}{nt}")

def emit_xreduce(reg, tmp, op):
    E(f"  v_mov_b32 v{tmp}, v{reg}")
    E(f"  s_nop 1")
    E(f"  v_permlane32_swap_b32 v{reg}, v{tmp}")
    E(f"  s_nop 1")
    E(f"  {op} v{reg}, v{reg}, v{tmp}")
    E(f"  v_mov_b32 v{tmp}, v{reg}")
    E(f"  s_nop 1")
    E(f"  v_permlane16_swap_b32 v{reg}, v{tmp}")
    E(f"  s_nop 1")
    E(f"  {op} v{reg}, v{reg}, v{tmp}")

def emit_step(nt, tag):
    SA, SB = V_S, V_S + 4
    E(f"  s_waitcnt vmcnt(16)")
    emit_stamp()
    for i in range(8):
        for t, sr in ((0, SA), (1, SB)):
            c = "0" if i == 0 else q4(sr)
            E(f"  v_mfma_f32_16x16x32_bf16 {q4(sr)}, {q4(kreg(t,i))}, {q4(V_Q+4*i)}, {c}")
    E(f"  s_add_u32 s{S_IDX}, s{S_IDX}, s{S_STRIDE}")
    emit_next_offsets()
    emit_k_loads(nt)
    E(f"  v_subrev_u32 v{V_T}, s{S_JA}, v{V_REM}")
    E(f"  v_subrev_u32 v{V_T+1}, s{S_JB}, v{V_REM}")
    for r in range(4):
        E(f"  v_cmp_gt_i32 s[{S_MASK+2*r}:{S_MASK+2*r+1}], v{V_T}, {r}")
    for r in range(4):
        E(f"  v_cmp_gt_i32 s[{S_MASK+8+2*r}:{S_MASK+8+2*r+1}], v{V_T+1}, {r}")
    E(f"  v_mov_b32 v{V_T+2}, 0xff800000")
    E(f"  s_nop 1")
    for r in range(8):
        E(f"  v_cndmask_b32 v{V_S+r}, v{V_T+2}, v{V_S+r}, s[{S_MASK+2*r}:{S_MASK+2*r+1}]")
    E(f"  v_max3_f32 v{V_T}, v{V_S}, v{V_S+1}, v{V_S+2}")
    E(f"  v_max3_f32 v{V_T+1}, v{V_S+3}, v{V_S+4}, v{V_S+5}")
    E(f"  v_max3_f32 v{V_T}, v{V_S+6}, v{V_S+7}, v{V_T}")
    E(f"  v_max_f32 v{V_T}, v{V_T}, v{V_T+1}")
    emit_xreduce(V_T, V_T+1, "v_max_f32")
    E(f"  v_max_f32 v{V_T}, v{V_M}, v{V_T}")
    E(f"  v_max_f32 v{V_T+1}, 0xff7fffff, v{V_T}")
    E(f"  v_mul_f32 v{V_T+1}, s{S_C}, v{V_T+1}")
    E(f"  v_fma_f32 v{V_T+2}, v{V_M}, s{S_C}, -v{V_T+1}")
    E(f"  v_exp_f32 v{V_T+2}, v{V_T+2}")
    E(f"  v_mov_b32 v{V_M}, v{V_T}")
    for r in range(8):
        E(f"  v_fma_f32 v{V_S+r}, v{V_S+r}, s{S_C}, -v{V_T+1}")
    for r in range(8):
        E(f"  v_exp_f32 v{V_S+r}, v{V_S+r}")
    E(f"  v_cmp_neq_f32 vcc, 1.0, v{V_T+2}")
    E(f"  v_mul_f32 v{V_L}, v{V_L}, v{V_T+2}")
    E(f"  v_add_f32 v{V_T+3}, v{V_S}, v{V_S+1}")
    E(f"  v_add_f32 v{V_T+4}, v{V_S+2}, v{V_S+3}")
    E(f"  v_add_f32 v{V_T+5}, v{V_S+4}, v{V_S+5}")
    E(f"  v_add_f32 v{V_T+6}, v{V_S+6}, v{V_S+7}")
    E(f"  v_add_f32 v{V_T+3}, v{V_T+3}, v{V_T+4}")
    E(f"  v_add_f32 v{V_T+5}, v{V_T+5}, v{V_T+6}")
    E(f"  v_add_f32 v{V_T+3}, v{V_T+3}, v{V_T+5}")
    E(f"  v_add_f32 v{V_L}, v{V_L}, v{V_T+3}")
    for k in range(4):
        E(f"  v_cvt_pk_bf16_f32 v{V_P+k}, v{V_S+2*k}, v{V_S+2*k+1}")
    E(f"  s_cbranch_vccz L_noscale_{tag}")
    for r in range(64):
        E(f"  v_mul_f32 v{V_O+r}, v{V_O+r}, v{V_T+2}")
    E(f"L_noscale_{tag}:")
    E(f"  s_waitcnt vmcnt(16)")
    emit_stamp()
    n = 0
    for hf in range(2):
        for jj in range(8):
            tq = V_T + (n & 1) * 4
            sel = S_SELHI if (jj & 1) else S_SELLO
            w = jj >> 1
            for t in range(2):
                for pp in range(2):
                    lo = vreg(t, 2*pp, hf) + w
                    hi = vreg(t, 2*pp+1, hf) + w
                    E(f"  v_perm_b32 v{tq + t*2 + pp}, v{hi}, v{lo}, s{sel}")
            E(f"  s_nop 1")
            E(f"  v_mfma_f32_16x16x32_bf16 {q4(oreg(hf,jj))}, {q4(tq)}, {q4(V_P)}, {q4(oreg(hf,jj))}")
            n += 1
    emit_v_loads(nt)
    E(f"  s_mov_b32 s{S_JA}, s{S_NJA}")
    E(f"  s_mov_b32 s{S_JB}, s{S_NJB}")

def main_kernel():
    E(f".globl {NAME}_kernel")
    E(f".p2align 8")
    E(f".type {NAME}_kernel,@function")
    E(f"{NAME}_kernel:")
    E(f"  s_cmp_ge_u32 s2, {NWG}")
    E(f"  s_cbranch_scc1 L_main_end")
    if STAMP:
        E(f"  s_mov_b32 s98, 0")
        E(f"  v_mov_b32 v252, 0")
    emit_stamp()
    E(f"  s_load_dwordx16 s[{S_ARG}:{S_ARG+15}], s[0:1], 0")
    VL, VCOL, VG, VBL = 8, 9, 10, 11
    VCTX, VKEY, VRANK = 16, 17, 18
    KB = V_Q
    TB = V_K; R0 = V_K + 64; OWN = V_K + 68; OWN2 = V_K + 72
    E(f"  v_and_b32 v{VL}, 63, v0")
    E(f"  v_lshrrev_b32 v12, 6, v0")
    E(f"  v_and_b32 v{VCOL}, 15, v0")
    E(f"  v_readfirstlane_b32 s{S_W}, v12")
    E(f"  v_lshrrev_b32 v{VG}, 4, v{VL}")
    E(f"  s_and_b32 s{S_KVH}, s2, 7")
    E(f"  s_lshl_b32 s{S_KVHOFF}, s{S_KVH}, 9")
    E(f"  s_lshr_b32 s{S_B}, s2, 3")
    E(f"  s_mov_b32 s{S_C}, {f2u(C_SCALE):#x}")
    E(f"  s_mov_b32 s{S_SELLO}, 0x05040100")
    E(f"  s_mov_b32 s{S_SELHI}, 0x07060302")
    E(f"  v_and_b32 v12, 31, v{VL}")
    E(f"  v_lshlrev_b32 v14, 2, v12")
    E(f"  v_lshlrev_b32 v12, 4, v12")
    E(f"  v_lshrrev_b32 v13, 5, v{VL}")
    E(f"  v_lshl_add_u32 v13, v13, 9, v12")
    E(f"  s_mov_b32 s{S_T2}, 4096")
    E(f"  s_mov_b32 s{S_T3}, 8192")
    E(f"  s_mov_b32 s{S_BASE}, 12288")
    E(f"  s_cmp_eq_u32 s{S_W}, {NPW}")
    E(f"  s_cselect_b32 s{S_SH}, 1, 0")
    E(f"  s_waitcnt lgkmcnt(0)")
    E(f"  global_load_dword v{VCTX}, v14, s[24:25]")
    for srd, lo, nb in ((S_XSRD, 22, 16384), (S_KSRD, 18, KV_BYTES), (S_VSRD, 20, KV_BYTES)):
        E(f"  s_mov_b32 s{srd}, s{lo}")
        E(f"  s_and_b32 s{srd+1}, s{lo+1}, 0xffff")
        E(f"  s_mov_b32 s{srd+2}, {nb}")
        E(f"  s_mov_b32 s{srd+3}, 0x00020000")
    so = ["0", f"s{S_T2}", f"s{S_T3}", f"s{S_BASE}"]
    E(f"  buffer_load_dwordx4 {q4(R0)}, v12, s[{S_XSRD}:{S_XSRD+3}], 0 offen")
    for i in range(16):
        E(f"  buffer_load_dwordx4 {q4(TB+4*i)}, v13, s[{S_XSRD}:{S_XSRD+3}], {so[i>>2]} offen offset:{(i&3)*1024}")
    E(f"  v_lshlrev_b32 v{V_KOFF}, 12, v{VCOL}")
    E(f"  v_lshl_add_u32 v{V_KOFF}, v{VG}, 4, v{V_KOFF}")
    E(f"  v_lshlrev_b32 v{V_VOFF}, 14, v{VG}")
    E(f"  v_lshl_add_u32 v{V_VOFF}, v{VCOL}, 4, v{V_VOFF}")
    E(f"  v_mov_b32 v{V_M}, 0xff800000")
    E(f"  v_mov_b32 v{V_L}, 0")
    E(f"  s_waitcnt vmcnt(17)")
    E(f"  v_max_i32 v{VCTX}, 0, v{VCTX}")
    E(f"  v_min_i32 v{VCTX}, 2048, v{VCTX}")
    E(f"  s_cmp_eq_u32 s{S_SH}, 1")
    E(f"  s_cbranch_scc1 L_pro_shared")
    E(f"  s_lshr_b32 s{S_P}, s{S_B}, 1")
    E(f"  s_and_b32 s{S_HALF}, s{S_B}, 1")
    E(f"  v_and_b32 v15, 31, v{VL}")
    E(f"  v_sub_u32 v15, 31, v15")
    E(f"  v_lshl_add_u32 v{VKEY}, v{VCTX}, 5, v15")
    E(f"  ds_write_b32 v14, v{VKEY} offset:{LDS_KEY}")
    E(f"  v_lshrrev_b32 v15, 5, v{VL}")
    E(f"  v_lshlrev_b32 v15, 6, v15")
    E(f"  v_mov_b32 v{VRANK}, 0")
    E(f"  s_waitcnt lgkmcnt(0)")
    for k in range(4):
        E(f"  ds_read_b128 {q4(KB+4*k)}, v15 offset:{LDS_KEY + 16*k}")
    E(f"  s_waitcnt lgkmcnt(0)")
    for bt in range(2):
        for k in range(8):
            E(f"  v_cmp_gt_u32 s[{S_MASK+2*k}:{S_MASK+2*k+1}], v{KB+bt*8+k}, v{VKEY}")
        E(f"  s_nop 1")
        for k in range(8):
            E(f"  v_addc_co_u32 v{VRANK}, vcc, 0, v{VRANK}, s[{S_MASK+2*k}:{S_MASK+2*k+1}]")
    E(f"  v_mov_b32 v15, v{VRANK}")
    E(f"  s_nop 1")
    E(f"  v_permlane32_swap_b32 v{VRANK}, v15")
    E(f"  s_nop 1")
    E(f"  v_add_u32 v{VRANK}, v{VRANK}, v15")
    E(f"  s_sub_u32 s{S_T0}, 31, s{S_P}")
    E(f"  v_cmp_eq_u32 s[{S_MASK}:{S_MASK+1}], s{S_P}, v{VRANK}")
    E(f"  v_cmp_eq_u32 s[{S_MASK+2}:{S_MASK+3}], s{S_T0}, v{VRANK}")
    E(f"  s_nop 3")
    E(f"  s_ff1_i32_b32 s{S_BL}, s{S_MASK}")
    E(f"  s_ff1_i32_b32 s{S_BS}, s{S_MASK+2}")
    E(f"  s_lshl_b32 s{S_T0}, s{S_BL}, 9")
    E(f"  s_lshl_b32 s{S_T1}, s{S_BS}, 9")
    E(f"  buffer_load_dwordx4 {q4(OWN)}, v12, s[{S_XSRD}:{S_XSRD+3}], s{S_T0} offen")
    E(f"  buffer_load_dwordx4 {q4(OWN2)}, v12, s[{S_XSRD}:{S_XSRD+3}], s{S_T1} offen")
    E(f"  v_readlane_b32 s{S_N1}, v{VCTX}, s{S_BL}")
    E(f"  v_readlane_b32 s{S_N2}, v{VCTX}, s{S_BS}")
    E(f"  s_waitcnt vmcnt(2)")
    E(f"  s_branch L_pro_common")
    E(f"L_pro_shared:")
    E(f"  s_lshr_b32 s{S_PART}, s{S_B}, 2")
    E(f"  s_and_b32 s{S_BQ}, s{S_B}, 3")
    E(f"  s_add_u32 s{S_SLOT}, s{S_PART}, 2")
    E(f"  s_lshl_b32 s{S_T0}, s{S_BQ}, 3")
    E(f"  s_mov_b32 s{S_NB}, 0")
    for k in range(8):
        E(f"  s_add_u32 s{S_T1}, s{S_T0}, {k}")
        E(f"  v_readlane_b32 s{S_T2}, v{VCTX}, s{S_T1}")
        E(f"  s_nop 3")
        E(f"  s_max_u32 s{S_NB}, s{S_NB}, s{S_T2}")
    E(f"  s_add_u32 s{S_NB}, s{S_NB}, 15")
    E(f"  s_lshr_b32 s{S_NB}, s{S_NB}, 4")
    E(f"  v_lshrrev_b32 v{VBL}, 1, v{VCOL}")
    E(f"  v_add_u32 v{VBL}, s{S_T0}, v{VBL}")
    E(f"  s_waitcnt vmcnt(0)")
    E(f"L_pro_common:")
    for c in range(4):
        E(f"  v_xor_b32 v{20+c}, v{TB+c}, v{R0+c}")
        for i in range(1, 16):
            E(f"  v_xor_b32 v{TB+4*i+c}, v{TB+4*i+c}, v{R0+c}")
        for i in range(1, 16, 2):
            if i + 1 < 16: E(f"  v_or3_b32 v{20+c}, v{20+c}, v{TB+4*i+c}, v{TB+4*(i+1)+c}")
            else: E(f"  v_or_b32 v{20+c}, v{20+c}, v{TB+4*i+c}")
    for c in range(4):
        E(f"  v_cmp_ne_u32 s[{S_MASK+2*c}:{S_MASK+2*c+1}], 0, v{20+c}")
    E(f"  v_and_b32 v{TB}, 31, v{VL}")
    E(f"  v_lshlrev_b32 v{TB}, 2, v{TB}")
    for c in range(4):
        E(f"  v_add_u32 v{TB+1+c}, {c}, v{TB}")
    for c in range(4):
        E(f"  s_or_b32 s{S_TK+c}, s{S_MASK+2*c}, s{S_MASK+2*c+1}")
    E(f"  s_cmp_eq_u32 s{S_SH}, 1")
    E(f"  s_cbranch_scc1 L_pro_shared2")
    def count(sctx, dst):
        E(f"  s_add_u32 s{sctx}, s{sctx}, 15")
        E(f"  s_lshr_b32 s{sctx}, s{sctx}, 4")
        E(f"  s_mov_b32 s{dst}, 0")
        for c in range(4):
            E(f"  s_add_u32 s{S_T0}, s{sctx}, {3-c}")
            E(f"  s_lshr_b32 s{S_T0}, s{S_T0}, 2")
            E(f"  s_lshl_b64 s[{S_MASK}:{S_MASK+1}], 1, s{S_T0}")
            E(f"  s_sub_u32 s{S_MASK}, s{S_MASK}, 1")
            E(f"  s_and_b32 s{S_MASK}, s{S_MASK}, s{S_TK+c}")
            E(f"  s_bcnt1_i32_b32 s{S_T0}, s{S_MASK}")
            E(f"  s_add_u32 s{dst}, s{dst}, s{S_T0}")
    count(S_N1, S_T2)
    count(S_N2, S_T3)
    E(f"  s_add_u32 s{S_T2}, s{S_T2}, 1")
    E(f"  s_lshr_b32 s{S_T2}, s{S_T2}, 1")
    E(f"  s_add_u32 s{S_T3}, s{S_T3}, 1")
    E(f"  s_lshr_b32 s{S_T3}, s{S_T3}, 1")
    E(f"  s_add_u32 s{S_MASK}, s{S_T2}, 1")
    E(f"  s_lshr_b32 s{S_MASK}, s{S_MASK}, 1")
    E(f"  s_lshr_b32 s{S_MASK+1}, s{S_T3}, 1")
    E(f"  s_sub_u32 s{S_MASK+2}, s{S_T2}, s{S_MASK}")
    E(f"  s_sub_u32 s{S_MASK+3}, s{S_T3}, s{S_MASK+1}")
    E(f"  s_cmp_eq_u32 s{S_HALF}, 0")
    E(f"  s_cselect_b32 s{S_MASK+4}, s{S_MASK}, s{S_MASK+2}")
    E(f"  s_cselect_b32 s{S_MASK+5}, s{S_MASK+1}, s{S_MASK+3}")
    E(f"  s_cselect_b32 s{S_MASK+6}, 0, s{S_MASK}")
    E(f"  s_cselect_b32 s{S_MASK+7}, 0, s{S_MASK+1}")
    E(f"  s_add_u32 s{S_T0}, s{S_MASK+4}, s{S_MASK+5}")
    E(f"  s_mul_i32 s{S_T1}, s{S_MASK+4}, 14")
    E(f"  s_mov_b32 s{S_W1}, 0")
    E(f"  s_mov_b32 s{S_T2}, s{S_T0}")
    for k in range(7):
        E(f"  s_cmp_le_u32 s{S_T2}, s{S_T1}")
        E(f"  s_addc_u32 s{S_W1}, s{S_W1}, 0")
        if k < 6:
            E(f"  s_add_u32 s{S_T2}, s{S_T2}, s{S_T0}")
            E(f"  s_add_u32 s{S_T2}, s{S_T2}, s{S_T0}")
    E(f"  s_cmp_lg_u32 s{S_MASK+4}, 0")
    E(f"  s_cselect_b32 s{S_T2}, 1, 0")
    E(f"  s_max_u32 s{S_W1}, s{S_W1}, s{S_T2}")
    E(f"  s_cmp_lg_u32 s{S_MASK+5}, 0")
    E(f"  s_cselect_b32 s{S_T2}, 6, 7")
    E(f"  s_min_u32 s{S_W1}, s{S_W1}, s{S_T2}")
    E(f"  s_sub_u32 s{S_T0}, s{S_W}, s{S_W1}")
    E(f"  s_sub_u32 s{S_T1}, {NPW}, s{S_W1}")
    E(f"  s_cmp_lt_u32 s{S_W}, s{S_W1}")
    E(f"  s_cselect_b32 s{S_B}, s{S_BL}, s{S_BS}")
    E(f"  s_cselect_b32 s{S_NB}, s{S_N1}, s{S_N2}")
    E(f"  s_cselect_b32 s{S_NSTEP}, s{S_MASK+4}, s{S_MASK+5}")
    E(f"  s_cselect_b32 s{S_ST}, s{S_MASK+6}, s{S_MASK+7}")
    E(f"  s_cselect_b32 s{S_IDX}, s{S_W}, s{S_T0}")
    E(f"  s_cselect_b32 s{S_STRIDE}, s{S_W1}, s{S_T1}")
    E(f"  s_cselect_b32 s{S_LIST}, 0, 1024")
    E(f"  s_cselect_b64 vcc, -1, 0")
    E(f"  v_mov_b32 v{VBL}, s{S_B}")
    E(f"  s_waitcnt vmcnt(0)")
    for c in range(4):
        E(f"  v_cndmask_b32 v{OWN+c}, v{OWN2+c}, v{OWN+c}, vcc")
    E(f"  s_mov_b32 s{S_T1}, 0")
    E(f"  s_branch L_pro_common2")
    E(f"L_pro_shared2:")
    for c in range(4):
        E(f"  v_mov_b32 v{OWN+c}, v{R0+c}")
    E(f"  s_mov_b32 s{S_LIST}, 2048")
    E(f"  s_mov_b32 s{S_T1}, -1")
    E(f"L_pro_common2:")
    E(f"  v_and_b32 v14, 1, v{VCOL}")
    E(f"  v_lshl_add_u32 v14, v{VBL}, 4, v14")
    E(f"  s_lshl_b32 s{S_T0}, s{S_KVH}, 1")
    E(f"  v_add_u32 v14, s{S_T0}, v14")
    E(f"  v_lshlrev_b32 v15, 9, v14")
    E(f"  v_lshl_add_u32 v15, v{VG}, 4, v15")
    for i in range(8):
        E(f"  global_load_dwordx4 {q4(V_Q+4*i)}, v15, s[16:17] offset:{i*64}")
    E(f"  v_lshlrev_b32 v14, 2, v{VBL}")
    E(f"  ds_bpermute_b32 v{V_REM}, v14, v{VCTX}")
    for c in range(4):
        E(f"  v_cmp_gt_u32 s[{S_MASK+8+2*c}:{S_MASK+8+2*c+1}], s{S_NB}, v{TB+1+c}")
    E(f"  s_nop 3")
    for c in range(4):
        E(f"  s_xor_b32 s{S_TK+c}, s{S_TK+c}, s{S_T1}")
        E(f"  s_and_b32 s{S_TK+c}, s{S_TK+c}, s{S_MASK+8+2*c}")
    E(f"  s_mov_b32 s{S_N}, 0")
    for c in range(4):
        E(f"  v_mbcnt_lo_u32_b32 v12, s{S_TK+c}, 0")
        E(f"  v_add_u32 v12, s{S_N}, v12")
        E(f"  v_lshlrev_b32 v12, 3, v12")
        E(f"  v_add_u32 v12, s{S_LIST}, v12")
        E(f"  v_mov_b32 v14, v{OWN+c}")
        E(f"  v_lshlrev_b32 v15, 4, v{TB+1+c}")
        E(f"  s_mov_b32 exec_lo, s{S_TK+c}")
        E(f"  s_mov_b32 exec_hi, 0")
        E(f"  ds_write_b64 v12, v[14:15]")
        E(f"  s_mov_b64 exec, -1")
        E(f"  s_bcnt1_i32_b32 s{S_T0}, s{S_TK+c}")
        E(f"  s_add_u32 s{S_N}, s{S_N}, s{S_T0}")
    E(f"  s_cmp_eq_u32 s{S_SH}, 0")
    E(f"  s_cbranch_scc1 L_pro_common3")
    E(f"  s_add_u32 s{S_T0}, s{S_N}, 1")
    E(f"  s_lshr_b32 s{S_T0}, s{S_T0}, 1")
    E(f"  s_lshr_b32 s{S_T1}, s{S_T0}, 3")
    E(f"  s_and_b32 s{S_T2}, s{S_T0}, 7")
    E(f"  s_mul_i32 s{S_ST}, s{S_PART}, s{S_T1}")
    E(f"  s_min_u32 s{S_BASE}, s{S_PART}, s{S_T2}")
    E(f"  s_add_u32 s{S_ST}, s{S_ST}, s{S_BASE}")
    E(f"  s_cmp_lt_u32 s{S_PART}, s{S_T2}")
    E(f"  s_cselect_b32 s{S_BASE}, 1, 0")
    E(f"  s_add_u32 s{S_NSTEP}, s{S_T1}, s{S_BASE}")
    E(f"  s_mov_b32 s{S_IDX}, 0")
    E(f"  s_mov_b32 s{S_STRIDE}, 1")
    E(f"L_pro_common3:")
    E(f"  s_lshl_b32 s{S_T3}, s{S_ST}, 1")
    E(f"  v_add_u32 v12, s{S_T3}, v{VL}")
    E(f"  v_lshlrev_b32 v13, 3, v12")
    E(f"  v_and_b32 v13, 0x3ff, v13")
    E(f"  v_add_u32 v13, s{S_LIST}, v13")
    E(f"  s_waitcnt lgkmcnt(0)")
    E(f"  ds_read_b64 v[14:15], v13")
    E(f"  v_cmp_gt_u32 vcc, s{S_N}, v12")
    E(f"  v_mov_b32 v13, 0x100000")
    E(f"  v_mov_b32 v12, 2112")
    E(f"  s_waitcnt lgkmcnt(0)")
    E(f"  v_cndmask_b32 v{V_PHYS}, v12, v14, vcc")
    E(f"  v_cndmask_b32 v{V_J16}, v13, v15, vcc")
    E(f"  v_lshlrev_b32 v12, 2, v{VG}")
    E(f"  v_sub_u32 v{V_REM}, v{V_REM}, v12")
    E(f"  s_cmp_ge_u32 s{S_IDX}, s{S_NSTEP}")
    E(f"  s_cbranch_scc1 L_zero_o")
    E(f"  s_cmp_eq_u32 s{S_SH}, 1")
    E(f"  s_cbranch_scc1 L_path_sh")
    for tag, nt in (("pr", " nt"), ("sh", "")):
        E(f"L_path_{tag}:")
        emit_next_offsets()
        emit_k_loads(nt)
        emit_v_loads(nt)
        E(f"  s_mov_b32 s{S_JA}, s{S_NJA}")
        E(f"  s_mov_b32 s{S_JB}, s{S_NJB}")
        for r in range(64):
            E(f"  v_mov_b32 v{V_O+r}, 0")
        emit_stamp()
        E(f"L_loop_{tag}:")
        emit_step(nt, tag)
        E(f"  s_cmp_lt_u32 s{S_IDX}, s{S_NSTEP}")
        E(f"  s_cbranch_scc1 L_loop_{tag}")
        E(f"  s_branch L_epilogue")
    E(f"L_zero_o:")
    for r in range(64):
        E(f"  v_mov_b32 v{V_O+r}, 0")
    E(f"L_epilogue:")
    E(f"  s_waitcnt vmcnt(0)")
    E(f"  s_nop 15")
    emit_xreduce(V_L, V_T, "v_add_f32")
    E(f"  v_and_b32 v{VL}, 63, v0")
    E(f"  v_and_b32 v{VCOL}, 15, v0")
    E(f"  v_lshrrev_b32 v{VG}, 4, v{VL}")
    E(f"  s_mov_b32 s{S_XSRD}, s30")
    E(f"  s_and_b32 s{S_XSRD+1}, s31, 0xffff")
    E(f"  s_mov_b32 s{S_XSRD+2}, {WS_BYTES}")
    E(f"  s_mov_b32 s{S_XSRD+3}, 0x00020000")
    lgs = NSLOT.bit_length() - 1
    E(f"  s_cmp_eq_u32 s{S_SH}, 1")
    E(f"  s_cbranch_scc1 L_epi_sh")
    SA = S_MASK
    SBI = S_MASK + 8
    for w in range(NPW):
        E(f"  s_cmp_lt_u32 {w}, s{S_W1}")
        E(f"  s_cselect_b32 s{SA+w}, 1.0, 0")
        E(f"  s_cselect_b32 s{SBI+w}, 0, 0xff800000")
    E(f"  v_lshlrev_b32 v12, 2, v0")
    E(f"  v_lshlrev_b32 v13, 2, v{VL}")
    E(f"  ds_write_b32 v12, v{V_M} offset:{LDS_M}")
    E(f"  s_waitcnt lgkmcnt(0)")
    E(f"  s_barrier")
    for w in range(NPW):
        E(f"  ds_read_b32 v{V_S+w}, v13 offset:{LDS_M + w*256}")
    E(f"  v_mov_b32 v14, 0xff800000")
    E(f"  v_mov_b32 v{V_P}, 0xff800000")
    E(f"  s_waitcnt lgkmcnt(0)")
    for w in range(NPW):
        E(f"  v_add_f32 v15, s{SBI+w}, v{V_S+w}")
        E(f"  v_max_f32 v14, v14, v15")
        E(f"  s_xor_b32 s{S_T0}, s{SBI+w}, 0xff800000")
        E(f"  v_add_f32 v15, s{S_T0}, v{V_S+w}")
        E(f"  v_max_f32 v{V_P}, v{V_P}, v15")
    E(f"  s_cmp_lt_u32 s{S_W}, s{S_W1}")
    E(f"  s_cselect_b64 vcc, -1, 0")
    E(f"  v_cndmask_b32 v15, v{V_P}, v14, vcc")
    E(f"  v_max_f32 v15, 0xff7fffff, v15")
    E(f"  v_mul_f32 v15, s{S_C}, v15")
    E(f"  v_fma_f32 v15, v{V_M}, s{S_C}, -v15")
    E(f"  v_exp_f32 v15, v15")
    E(f"  s_nop 0")
    E(f"  v_mul_f32 v{V_L}, v{V_L}, v15")
    for r in range(64):
        E(f"  v_mul_f32 v{V_O+r}, v{V_O+r}, v15")
    E(f"  ds_write_b32 v12, v{V_L} offset:{LDS_L}")
    E(f"  s_lshl_b32 s{S_T0}, s{S_W}, 11")
    E(f"  v_lshl_add_u32 v15, v{VG}, 1, v{VCOL}")
    E(f"  v_lshlrev_b32 v15, 4, v15")
    E(f"  v_add_u32 v15, s{S_T0}, v15")
    E(f"  v_cmp_gt_u32 vcc, 2, v{VCOL}")
    E(f"  s_nop 4")
    E(f"  s_mov_b64 exec, vcc")
    for qd in range(16):
        E(f"  ds_write_b128 v15, {q4(V_O+4*qd)} offset:{LDS_O + qd*128}")
    E(f"  s_mov_b64 exec, -1")
    E(f"  s_waitcnt lgkmcnt(0)")
    E(f"  s_barrier")
    E(f"  v_lshlrev_b32 v12, 2, v0")
    for w in range(NPW):
        E(f"  ds_read_b32 v{V_S+w}, v12 offset:{LDS_O + w*2048}")
    E(f"  s_cmp_lg_u32 s{S_W}, 0")
    E(f"  s_cbranch_scc1 L_epi_pr1")
    for w in range(NPW):
        E(f"  ds_read_b32 v{V_K+w}, v12 offset:{LDS_O + w*2048 + 448*4}")
    for w in range(NPW):
        E(f"  ds_read_b32 v{V_K+8+w}, v13 offset:{LDS_L + w*256}")
    E(f"L_epi_pr1:")
    def addr(tv, dst):
        E(f"  v_lshrrev_b32 v{V_V}, 5, v{tv}")
        E(f"  v_bfe_u32 v{V_V+1}, v{tv}, 2, 3")
        E(f"  v_and_b32 v{V_V+2}, 3, v{tv}")
        E(f"  v_lshrrev_b32 v{V_V+3}, 3, v{V_V}")
        E(f"  v_lshlrev_b32 v{V_V+3}, 7, v{V_V+3}")
        E(f"  v_and_b32 v{V_V}, 7, v{V_V}")
        E(f"  v_add_u32 v{V_V+3}, v{V_V+3}, v{V_V}")
        E(f"  v_lshl_add_u32 v{V_V+3}, v{V_V+2}, 3, v{V_V+3}")
        E(f"  v_lshrrev_b32 v{V_V}, 1, v{V_V+1}")
        E(f"  v_lshl_add_u32 v{V_V+3}, v{V_V}, 5, v{V_V+3}")
        E(f"  v_and_b32 v{V_V+1}, 1, v{V_V+1}")
        E(f"  v_lshlrev_b32 v{V_V+1}, {lgs+10}, v{V_V+1}")
        E(f"  v_lshl_add_u32 v{dst}, v{V_V+3}, 2, v{V_V+1}")
    for sb, dst in ((S_BL, S_T2), (S_BS, S_T3)):
        E(f"  s_lshl_b32 s{dst}, s{sb}, 4")
        E(f"  s_lshl_b32 s{S_T0}, s{S_KVH}, 1")
        E(f"  s_add_u32 s{dst}, s{dst}, s{S_T0}")
        E(f"  s_lshl_b32 s{dst}, s{dst}, {lgs}")
        E(f"  s_add_u32 s{dst}, s{dst}, s{S_HALF}")
        E(f"  s_lshl_b32 s{dst}, s{dst}, 10")
    def twosum(base, da, db):
        E(f"  v_mul_f32 v{da}, s{SA}, v{base}")
        E(f"  v_mov_b32 v{db}, v{base}")
        for w in range(1, NPW):
            E(f"  v_fma_f32 v{da}, v{base+w}, s{SA+w}, v{da}")
            E(f"  v_add_f32 v{db}, v{db}, v{base+w}")
        E(f"  v_sub_f32 v{db}, v{db}, v{da}")
    addr(0, V_V+4)
    E(f"  s_waitcnt lgkmcnt(0)")
    def twosum_exact(base, da, db):
        E(f"  v_mov_b32 v{da}, 0")
        E(f"  v_mov_b32 v{db}, 0")
        for w in range(NPW):
            E(f"  v_fma_f32 v{da}, v{base+w}, s{SA+w}, v{da}")
            E(f"  s_xor_b32 s{S_T0}, s{SA+w}, 0x3f800000")
            E(f"  v_fma_f32 v{db}, v{base+w}, s{S_T0}, v{db}")
    twosum_exact(V_S, V_V+6, V_V+7)
    E(f"  buffer_store_dword v{V_V+6}, v{V_V+4}, s[{S_XSRD}:{S_XSRD+3}], s{S_T2} offen")
    E(f"  buffer_store_dword v{V_V+7}, v{V_V+4}, s[{S_XSRD}:{S_XSRD+3}], s{S_T3} offen")
    E(f"  s_cmp_lg_u32 s{S_W}, 0")
    E(f"  s_cbranch_scc1 L_epi_done")
    E(f"  v_add_u32 v12, 448, v{VL}")
    addr(12, V_V+5)
    twosum_exact(V_K, V_V+8, V_V+9)
    E(f"  buffer_store_dword v{V_V+8}, v{V_V+5}, s[{S_XSRD}:{S_XSRD+3}], s{S_T2} offen")
    E(f"  buffer_store_dword v{V_V+9}, v{V_V+5}, s[{S_XSRD}:{S_XSRD+3}], s{S_T3} offen")
    twosum_exact(V_K+8, 15, V_P+1)
    E(f"  v_lshlrev_b32 v12, {lgs+3}, v{VL}")
    E(f"  s_lshr_b32 s{S_T2}, s{S_T2}, 7")
    E(f"  s_lshr_b32 s{S_T3}, s{S_T3}, 7")
    E(f"  s_add_u32 s{S_T2}, s{S_T2}, {WS_ML_OFF}")
    E(f"  s_add_u32 s{S_T3}, s{S_T3}, {WS_ML_OFF}")
    E(f"  s_mov_b64 exec, 3")
    E(f"  buffer_store_dwordx2 v[14:15], v12, s[{S_XSRD}:{S_XSRD+3}], s{S_T2} offen")
    E(f"  buffer_store_dwordx2 v[{V_P}:{V_P+1}], v12, s[{S_XSRD}:{S_XSRD+3}], s{S_T3} offen")
    E(f"  s_branch L_epi_done")
    E(f"L_epi_sh:")
    E(f"  v_lshrrev_b32 v{VBL}, 1, v{VCOL}")
    E(f"  s_lshl_b32 s{S_T0}, s{S_BQ}, 3")
    E(f"  v_add_u32 v{VBL}, s{S_T0}, v{VBL}")
    E(f"  v_and_b32 v14, 1, v{VCOL}")
    E(f"  v_lshl_add_u32 v14, v{VBL}, 4, v14")
    E(f"  s_lshl_b32 s{S_T0}, s{S_KVH}, 1")
    E(f"  v_add_u32 v14, s{S_T0}, v14")
    E(f"  v_lshlrev_b32 v14, {lgs}, v14")
    E(f"  v_add_u32 v14, s{S_SLOT}, v14")
    E(f"  v_lshlrev_b32 v15, 10, v14")
    E(f"  v_lshl_add_u32 v15, v{VG}, 7, v15")
    E(f"  v_lshlrev_b32 v14, 3, v14")
    E(f"  v_add_u32 v14, {WS_ML_OFF}, v14")
    for hf in range(2):
        for r in range(4):
            base = V_K + (hf*4 + r) * 8
            for jj in range(8):
                E(f"  v_mov_b32 v{base+jj}, v{oreg(hf,jj)+r}")
    for hf in range(2):
        for r in range(4):
            base = V_K + (hf*4 + r) * 8
            for half in range(2):
                E(f"  buffer_store_dwordx4 {q4(base+4*half)}, v15, s[{S_XSRD}:{S_XSRD+3}], 0 offen offset:{hf*512 + r*32 + half*16}")
    E(f"  v_mov_b32 v12, v{V_M}")
    E(f"  v_mov_b32 v13, v{V_L}")
    E(f"  s_mov_b64 exec, 0xffff")
    E(f"  buffer_store_dwordx2 v[12:13], v14, s[{S_XSRD}:{S_XSRD+3}], 0 offen")
    E(f"  s_mov_b64 exec, -1")
    E(f"  s_barrier")
    E(f"  s_barrier")
    E(f"L_epi_done:")
    if STAMP:
        emit_stamp()
        E(f"  s_mov_b64 exec, -1")
        E(f"  s_lshl_b32 s99, s2, 3")
        E(f"  s_add_u32 s99, s99, s{S_W}")
        E(f"  s_lshl_b32 s99, s99, 8")
        E(f"  s_add_u32 s99, s99, 0xa00000")
        E(f"  v_and_b32 v253, 63, v0")
        E(f"  v_lshlrev_b32 v253, 2, v253")
        E(f"  v_add_u32 v253, s99, v253")
        E(f"  global_store_dword v253, v252, s[30:31]")
    E(f"L_main_end:")
    E(f"  s_endpgm")

def combine_kernel():
    MASKRAW = -998244352.0 * 16.0
    E(f".globl combine_kernel")
    E(f".p2align 8")
    E(f".type combine_kernel,@function")
    E(f"combine_kernel:")
    E(f"  s_cmp_ge_u32 s2, 128")
    E(f"  s_cbranch_scc1 L_cmb_end")
    E(f"  s_load_dwordx16 s[16:31], s[0:1], 0")
    E(f"  v_lshrrev_b32 v1, 6, v0")
    E(f"  v_and_b32 v2, 63, v0")
    E(f"  s_nop 0")
    E(f"  v_readfirstlane_b32 s3, v1")
    E(f"  s_lshl_b32 s4, s2, 2")
    E(f"  s_nop 2")
    E(f"  s_add_u32 s4, s4, s3")
    E(f"  s_mov_b32 s56, {f2u(C_SCALE):#x}")
    E(f"  s_waitcnt lgkmcnt(0)")
    E(f"  s_lshl_b32 s5, s4, {(NSLOT*8).bit_length()-1}")
    E(f"  s_add_u32 s5, s5, {WS_ML_OFF}")
    E(f"  s_load_dwordx16 s[32:47], s[30:31], s5")
    E(f"  s_add_u32 s5, s5, 64")
    E(f"  s_load_dwordx4 s[48:51], s[30:31], s5")
    E(f"  s_lshr_b32 s6, s4, 4")
    E(f"  s_lshl_b32 s7, s6, 2")
    E(f"  s_load_dword s52, s[24:25], s7")
    E(f"  s_mov_b32 s8, s30")
    E(f"  s_and_b32 s9, s31, 0xffff")
    E(f"  s_mov_b32 s10, {WS_BYTES}")
    E(f"  s_mov_b32 s11, 0x00020000")
    E(f"  s_lshl_b32 s12, s4, {10 + NSLOT.bit_length()-1}")
    E(f"  s_add_u32 s13, s12, 4096")
    E(f"  s_add_u32 s14, s12, 8192")
    E(f"  v_lshlrev_b32 v3, 4, v2")
    for s in range(NUSED):
        E(f"  buffer_load_dwordx4 v[{8+4*s}:{11+4*s}], v3, s[8:11], s{12 + (s>>2)} offen offset:{(s&3)*1024}")
    E(f"  s_waitcnt lgkmcnt(0)")
    E(f"  v_mov_b32 v4, s32")
    for s in range(1, NUSED):
        E(f"  v_max_f32 v4, s{32+2*s}, v4")
    E(f"  s_max_i32 s52, s52, 0")
    E(f"  s_min_i32 s52, s52, 2048")
    E(f"  s_sub_u32 s53, 2048, s52")
    E(f"  s_mov_b32 s54, 0")
    E(f"  s_cmp_eq_u32 s53, 0")
    E(f"  s_cbranch_scc1 L_cmb_fast")
    E(f"  v_cmp_gt_f32 vcc, {f2u(MASKRAW + 2048.0):#x}, v4")
    E(f"  s_nop 4")
    E(f"  s_cbranch_vccz L_cmb_fast")
    E(f"  s_mov_b32 s54, 1")
    E(f"  v_max_f32 v4, {f2u(MASKRAW):#x}, v4")
    E(f"L_cmb_fast:")
    E(f"  v_max_f32 v4, 0xff7fffff, v4")
    E(f"  v_mul_f32 v5, s56, v4")
    E(f"  v_mov_b32 v6, 0")
    A = 48
    assert 8 + 4*NUSED <= A
    for k in range(4):
        E(f"  v_mov_b32 v{A+k}, 0")
    E(f"  s_waitcnt vmcnt(0)")
    for s in range(NUSED):
        E(f"  v_mov_b32 v7, s{32+2*s}")
        E(f"  v_fma_f32 v7, v7, s56, -v5")
        E(f"  v_exp_f32 v7, v7")
        E(f"  s_nop 0")
        E(f"  v_fma_f32 v6, v7, s{33+2*s}, v6")
        for k in range(4):
            E(f"  v_fma_f32 v{A+k}, v7, v{8+4*s+k}, v{A+k}")
    E(f"  s_cmp_eq_u32 s54, 0")
    E(f"  s_cbranch_scc1 L_cmb_out")
    E(f"  v_mov_b32 v7, {f2u(MASKRAW):#x}")
    E(f"  v_fma_f32 v7, v7, s56, -v5")
    E(f"  v_exp_f32 v7, v7")
    E(f"  v_cvt_f32_u32 v52, s53")
    E(f"  v_fma_f32 v6, v7, v52, v6")
    E(f"  s_mov_b32 s8, s20")
    E(f"  s_and_b32 s9, s21, 0xffff")
    E(f"  s_mov_b32 s10, {KV_BYTES}")
    E(f"  s_mov_b32 s11, 0x00020000")
    E(f"  s_and_b32 s13, s4, 15")
    E(f"  s_lshr_b32 s13, s13, 1")
    E(f"  s_lshl_b32 s13, s13, 9")
    E(f"  v_lshlrev_b32 v3, 3, v2")
    for k in range(4):
        E(f"  v_mov_b32 v{54+k}, 0")
    E(f"L_cmb_slow:")
    E(f"  s_lshr_b32 s14, s52, 4")
    E(f"  s_lshl_b32 s14, s14, 2")
    E(f"  s_lshl_b32 s15, s6, 9")
    E(f"  s_add_u32 s14, s14, s15")
    E(f"  s_load_dword s15, s[22:23], s14")
    E(f"  s_waitcnt lgkmcnt(0)")
    E(f"  s_lshl_b32 s15, s15, 16")
    E(f"  s_and_b32 s14, s52, 15")
    E(f"  s_lshl_b32 s14, s14, 12")
    E(f"  s_add_u32 s15, s15, s14")
    E(f"  s_add_u32 s15, s15, s13")
    E(f"  buffer_load_dwordx2 v[58:59], v3, s[8:11], s15 offen")
    E(f"  s_waitcnt vmcnt(0)")
    E(f"  v_lshlrev_b32 v60, 16, v58")
    E(f"  v_and_b32 v61, 0xffff0000, v58")
    E(f"  v_lshlrev_b32 v62, 16, v59")
    E(f"  v_and_b32 v63, 0xffff0000, v59")
    for k in range(4):
        E(f"  v_add_f32 v{54+k}, v{54+k}, v{60+k}")
    E(f"  s_add_u32 s52, s52, 1")
    E(f"  s_cmp_lt_u32 s52, 2048")
    E(f"  s_cbranch_scc1 L_cmb_slow")
    for k in range(4):
        E(f"  v_fma_f32 v{A+k}, v7, v{54+k}, v{A+k}")
    E(f"L_cmb_out:")
    E(f"  v_rcp_f32 v6, v6")
    E(f"  s_nop 0")
    for k in range(4):
        E(f"  v_mul_f32 v{A+k}, v{A+k}, v6")
    E(f"  v_cvt_pk_bf16_f32 v52, v{A}, v{A+1}")
    E(f"  v_cvt_pk_bf16_f32 v53, v{A+2}, v{A+3}")
    E(f"  s_mov_b32 s8, s26")
    E(f"  s_and_b32 s9, s27, 0xffff")
    E(f"  s_mov_b32 s10, {512*512}")
    E(f"  s_mov_b32 s11, 0x00020000")
    E(f"  s_lshl_b32 s12, s4, 9")
    E(f"  v_lshlrev_b32 v3, 3, v2")
    E(f"  buffer_store_dwordx2 v[52:53], v3, s[8:11], s12 offen")
    E(f"L_cmb_end:")
    E(f"  s_endpgm")

def kd(name, vgpr, sgpr):
    E(f".amdhsa_kernel {name}")
    E(f"  .amdhsa_next_free_vgpr {vgpr}")
    E(f"  .amdhsa_next_free_sgpr {sgpr}")
    E(f"  .amdhsa_accum_offset {(vgpr+3)//4*4}")
    E(f"  .amdhsa_group_segment_fixed_size 0")
    E(f"  .amdhsa_kernarg_size 64")
    E(f"  .amdhsa_user_sgpr_count 2")
    E(f"  .amdhsa_user_sgpr_kernarg_segment_ptr 1")
    E(f"  .amdhsa_system_sgpr_workgroup_id_x 1")
    E(f"  .amdhsa_float_denorm_mode_32 3")
    E(f".end_amdhsa_kernel")

hdr = open("cdna_kernels/" + NAME + ".s.ref").read().split("; Override launch")[0]
E(hdr.rstrip())
E(f"; @launch kernel={NAME}_kernel grid=({NWG},1,1) block=({NW*64},1,1) lds={LDS_BYTES}")
E(f"; @launch kernel=combine_kernel grid=(128,1,1) block=(256,1,1) lds=0")
E('.amdgcn_target "amdgcn-amd-amdhsa--gfx950"')
E(".text")
main_kernel()
combine_kernel()
E('.section .rodata,"a"')
E(".p2align 6")
kd(f"{NAME}_kernel", V_END, S_END)
E(".p2align 6")
kd("combine_kernel", 64, 60)
open(sys.argv[1] if len(sys.argv) > 1 else "cdna_kernels/" + NAME + ".s", "w").write("\n".join(out) + "\n")
```

```python
import sys, os, struct
STAMP = int(os.environ.get('STAMP', '0'))
SHFIRST = int(os.environ.get('SHFIRST', '0'))
MIX = int(os.environ.get('MIX', '1'))
MOVREL = int(os.environ.get('MOVREL', '1'))
ROT = int(os.environ.get('ROT', '0'))
NAME = "standalone__paged_block_table_kv_radixattention__sampling"
NW = 8
NPW = 7
NWG = 256
SH_PARTS = 8
NSLOT = 16
NUSED = 10
WS_O_BYTES = 512 * NSLOT * 1024
WS_ML_OFF = WS_O_BYTES
WS_BYTES = WS_O_BYTES + 512 * NSLOT * 8
KV_BYTES = 2112 * 65536
C_SCALE = 0.0625 * 1.4426950408889634
LDS_LIST = 0
LDS_M = 3072
LDS_L = 5120
LDS_KEY = 7168
LDS_O = 7424
LDS_BYTES = LDS_O + NPW * 2048

def f2u(f):
    return struct.unpack("<I", struct.pack("<f", f))[0]
out = []
def E(s=""):
    out.append(s)

V_KOFF, V_VOFF, V_PHYS, V_J16, V_REM, V_M, V_L = 1, 2, 3, 4, 5, 6, 7
V_T = 8; V_S = 16; V_P = 24; V_Q = 28; V_O = 60; V_K = 124; V_V = 188
V_END = 256 if STAMP else 252
S_KSRD, S_VSRD, S_XSRD = 4, 8, 12
S_ARG = 16
S_W, S_KVH, S_SH, S_BQ, S_KVHOFF = 32, 33, 34, 35, 36
S_NSTEP, S_IDX, S_JA, S_JB = 37, 38, 39, 40
S_OFFA, S_OFFB = 41, 42
S_B = 43
S_VO = 44
S_C, S_SELLO, S_SELHI = 52, 53, 54
S_T0, S_T1, S_T2, S_T3 = 55, 56, 57, 58
S_LIST = 59
S_MASK = 60
S_CTX8 = 76
S_NJA, S_NJB, S_N = 84, 85, 86
S_TK = 88
S_BASE, S_PART, S_SLOT = 92, 93, 94
S_BL, S_BS, S_W1, S_HALF, S_P, S_N1, S_N2, S_ST = 76, 77, 78, 79, 80, 81, 82, 83
S_NB, S_STRIDE = 87, 95
S_KVW = 3
S_END = 102 if STAMP else 96

def kreg(tile, i): return V_K + tile * 32 + i * 4
def vreg(tile, e, hf): return V_V + ((tile * 4 + e) * 2 + hf) * 4
def oreg(hf, jj): return V_O + (hf * 8 + jj) * 4
def q4(r): return f"v[{r}:{r+3}]"

def emit_stamp():
    if not STAMP: return
    E(f"  s_memrealtime s[96:97]")
    E(f"  s_waitcnt lgkmcnt(0)")
    E(f"  s_mov_b32 m0, s98")
    E(f"  s_nop 0")
    E(f"  v_writelane_b32 v252, s96, m0")
    E(f"  s_add_u32 s98, s98, 1")
    E(f"  s_and_b32 s98, s98, 63")

def emit_next_offsets():
    E(f"  s_lshl_b32 s{S_T0}, s{S_IDX}, 1")
    E(f"  s_and_b32 s{S_T0}, s{S_T0}, 63")
    E(f"  s_add_u32 s{S_T1}, s{S_T0}, 1")
    E(f"  v_readlane_b32 s{S_OFFA}, v{V_PHYS}, s{S_T0}")
    E(f"  v_readlane_b32 s{S_OFFB}, v{V_PHYS}, s{S_T1}")
    E(f"  v_readlane_b32 s{S_NJA}, v{V_J16}, s{S_T0}")
    E(f"  v_readlane_b32 s{S_NJB}, v{V_J16}, s{S_T1}")
    E(f"  s_cmp_lt_u32 s{S_IDX}, s{S_NSTEP}")
    E(f"  s_nop 2")
    E(f"  s_cselect_b32 s{S_OFFA}, s{S_OFFA}, 2112")
    E(f"  s_cselect_b32 s{S_OFFB}, s{S_OFFB}, 2112")
    E(f"  s_lshl_b32 s{S_OFFA}, s{S_OFFA}, 16")
    E(f"  s_lshl_b32 s{S_OFFB}, s{S_OFFB}, 16")
    E(f"  s_add_u32 s{S_OFFA}, s{S_OFFA}, s{S_KVHOFF}")
    E(f"  s_add_u32 s{S_OFFB}, s{S_OFFB}, s{S_KVHOFF}")
    for t, so in ((0, S_OFFA), (1, S_OFFB)):
        for e in range(4):
            if e == 0: E(f"  s_mov_b32 s{S_VO + t*4}, s{so}")
            else: E(f"  s_add_u32 s{S_VO + t*4 + e}, s{so}, {e*4096}")

def emit_k_loads(nt):
    for t, so in ((0, S_OFFA), (1, S_OFFB)):
        for i in range(8):
            E(f"  buffer_load_dwordx4 {q4(kreg(t,i))}, v{V_KOFF}, s[{S_KSRD}:{S_KSRD+3}], s{so} offen offset:{i*64}{nt}")

def emit_v_loads(nt):
    for t in range(2):
        for e in range(4):
            for hf in range(2):
                E(f"  buffer_load_dwordx4 {q4(vreg(t,e,hf))}, v{V_VOFF}, s[{S_VSRD}:{S_VSRD+3}], s{S_VO+t*4+e} offen offset:{hf*256}{nt}")

def emit_xreduce(reg, tmp, op):
    E(f"  v_mov_b32 v{tmp}, v{reg}")
    E(f"  s_nop 1")
    E(f"  v_permlane32_swap_b32 v{reg}, v{tmp}")
    E(f"  s_nop 1")
    E(f"  {op} v{reg}, v{reg}, v{tmp}")
    E(f"  v_mov_b32 v{tmp}, v{reg}")
    E(f"  s_nop 1")
    E(f"  v_permlane16_swap_b32 v{reg}, v{tmp}")
    E(f"  s_nop 1")
    E(f"  {op} v{reg}, v{reg}, v{tmp}")

def emit_step(nt, tag):
    SA, SB = V_S, V_S + 4
    E(f"  s_waitcnt vmcnt(16)")
    emit_stamp()
    for i in range(8):
        for t, sr in ((0, SA), (1, SB)):
            c = "0" if i == 0 else q4(sr)
            E(f"  v_mfma_f32_16x16x32_bf16 {q4(sr)}, {q4(kreg(t,i))}, {q4(V_Q+4*i)}, {c}")
    E(f"  s_add_u32 s{S_IDX}, s{S_IDX}, s{S_STRIDE}")
    emit_next_offsets()
    emit_k_loads(nt)
    E(f"  v_subrev_u32 v{V_T}, s{S_JA}, v{V_REM}")
    E(f"  v_subrev_u32 v{V_T+1}, s{S_JB}, v{V_REM}")
    for r in range(4):
        E(f"  v_cmp_gt_i32 s[{S_MASK+2*r}:{S_MASK+2*r+1}], v{V_T}, {r}")
    for r in range(4):
        E(f"  v_cmp_gt_i32 s[{S_MASK+8+2*r}:{S_MASK+8+2*r+1}], v{V_T+1}, {r}")
    E(f"  v_mov_b32 v{V_T+2}, 0xff800000")
    E(f"  s_nop 1")
    for r in range(8):
        E(f"  v_cndmask_b32 v{V_S+r}, v{V_T+2}, v{V_S+r}, s[{S_MASK+2*r}:{S_MASK+2*r+1}]")
    E(f"  v_max3_f32 v{V_T}, v{V_S}, v{V_S+1}, v{V_S+2}")
    E(f"  v_max3_f32 v{V_T+1}, v{V_S+3}, v{V_S+4}, v{V_S+5}")
    E(f"  v_max3_f32 v{V_T}, v{V_S+6}, v{V_S+7}, v{V_T}")
    E(f"  v_max_f32 v{V_T}, v{V_T}, v{V_T+1}")
    emit_xreduce(V_T, V_T+1, "v_max_f32")
    E(f"  v_max_f32 v{V_T}, v{V_M}, v{V_T}")
    E(f"  v_max_f32 v{V_T+1}, 0xff7fffff, v{V_T}")
    E(f"  v_mul_f32 v{V_T+1}, s{S_C}, v{V_T+1}")
    E(f"  v_fma_f32 v{V_T+2}, v{V_M}, s{S_C}, -v{V_T+1}")
    E(f"  v_exp_f32 v{V_T+2}, v{V_T+2}")
    E(f"  v_mov_b32 v{V_M}, v{V_T}")
    for r in range(8):
        E(f"  v_fma_f32 v{V_S+r}, v{V_S+r}, s{S_C}, -v{V_T+1}")
    for r in range(8):
        E(f"  v_exp_f32 v{V_S+r}, v{V_S+r}")
    E(f"  v_cmp_neq_f32 vcc, 1.0, v{V_T+2}")
    E(f"  v_mul_f32 v{V_L}, v{V_L}, v{V_T+2}")
    E(f"  v_add_f32 v{V_T+3}, v{V_S}, v{V_S+1}")
    E(f"  v_add_f32 v{V_T+4}, v{V_S+2}, v{V_S+3}")
    E(f"  v_add_f32 v{V_T+5}, v{V_S+4}, v{V_S+5}")
    E(f"  v_add_f32 v{V_T+6}, v{V_S+6}, v{V_S+7}")
    E(f"  v_add_f32 v{V_T+3}, v{V_T+3}, v{V_T+4}")
    E(f"  v_add_f32 v{V_T+5}, v{V_T+5}, v{V_T+6}")
    E(f"  v_add_f32 v{V_T+3}, v{V_T+3}, v{V_T+5}")
    E(f"  v_add_f32 v{V_L}, v{V_L}, v{V_T+3}")
    for k in range(4):
        E(f"  v_cvt_pk_bf16_f32 v{V_P+k}, v{V_S+2*k}, v{V_S+2*k+1}")
    E(f"  s_cbranch_vccz L_noscale_{tag}")
    for r in range(64):
        E(f"  v_mul_f32 v{V_O+r}, v{V_O+r}, v{V_T+2}")
    E(f"L_noscale_{tag}:")
    E(f"  s_waitcnt vmcnt(16)")
    emit_stamp()
    n = 0
    for hf in range(2):
        for jj in range(8):
            tq = V_T + (n & 1) * 4
            sel = S_SELHI if (jj & 1) else S_SELLO
            w = jj >> 1
            for t in range(2):
                for pp in range(2):
                    lo = vreg(t, 2*pp, hf) + w
                    hi = vreg(t, 2*pp+1, hf) + w
                    E(f"  v_perm_b32 v{tq + t*2 + pp}, v{hi}, v{lo}, s{sel}")
            E(f"  s_nop 1")
            E(f"  v_mfma_f32_16x16x32_bf16 {q4(oreg(hf,jj))}, {q4(tq)}, {q4(V_P)}, {q4(oreg(hf,jj))}")
            n += 1
    emit_v_loads(nt)
    E(f"  s_mov_b32 s{S_JA}, s{S_NJA}")
    E(f"  s_mov_b32 s{S_JB}, s{S_NJB}")

def main_kernel():
    E(f".globl {NAME}_kernel")
    E(f".p2align 8")
    E(f".type {NAME}_kernel,@function")
    E(f"{NAME}_kernel:")
    E(f"  s_cmp_ge_u32 s2, {NWG}")
    E(f"  s_cbranch_scc1 L_main_end")
    if STAMP:
        E(f"  s_mov_b32 s98, 0")
        E(f"  v_mov_b32 v252, 0")
    emit_stamp()
    E(f"  s_load_dwordx16 s[{S_ARG}:{S_ARG+15}], s[0:1], 0")
    VL, VCOL, VG, VBL = 8, 9, 10, 11
    VCTX, VKEY, VRANK = 16, 17, 18
    KB = V_Q
    TB = V_K; R0 = V_K + 64; OWN = V_K + 68; OWN2 = V_K + 72
    if SHFIRST:
        E(f"  v_add_u32 v0, 448, v0")
        E(f"  v_and_b32 v0, 511, v0")
    E(f"  v_and_b32 v{VL}, 63, v0")
    E(f"  v_lshrrev_b32 v12, 6, v0")
    E(f"  v_and_b32 v{VCOL}, 15, v0")
    E(f"  v_readfirstlane_b32 s{S_W}, v12")
    E(f"  v_lshrrev_b32 v{VG}, 4, v{VL}")
    E(f"  s_lshr_b32 s{S_B}, s2, 3")
    if ROT:
        E(f"  s_add_u32 s{S_KVH}, s2, s{S_B}")
        E(f"  s_and_b32 s{S_KVH}, s{S_KVH}, 7")
    else:
        E(f"  s_and_b32 s{S_KVH}, s2, 7")
    E(f"  s_lshl_b32 s{S_KVHOFF}, s{S_KVH}, 9")
    E(f"  s_mov_b32 s{S_C}, {f2u(C_SCALE):#x}")
    E(f"  s_mov_b32 s{S_SELLO}, 0x05040100")
    E(f"  s_mov_b32 s{S_SELHI}, 0x07060302")
    E(f"  v_and_b32 v12, 31, v{VL}")
    E(f"  v_lshlrev_b32 v14, 2, v12")
    E(f"  v_lshlrev_b32 v12, 4, v12")
    E(f"  v_lshrrev_b32 v13, 5, v{VL}")
    E(f"  v_lshl_add_u32 v13, v13, 9, v12")
    E(f"  s_mov_b32 s{S_T2}, 4096")
    E(f"  s_mov_b32 s{S_T3}, 8192")
    E(f"  s_mov_b32 s{S_BASE}, 12288")
    E(f"  s_cmp_eq_u32 s{S_W}, {NPW}")
    E(f"  s_cselect_b32 s{S_SH}, 1, 0")
    E(f"  s_waitcnt lgkmcnt(0)")
    E(f"  global_load_dword v{VCTX}, v14, s[24:25]")
    for srd, lo, nb in ((S_XSRD, 22, 16384), (S_KSRD, 18, KV_BYTES), (S_VSRD, 20, KV_BYTES)):
        E(f"  s_mov_b32 s{srd}, s{lo}")
        E(f"  s_and_b32 s{srd+1}, s{lo+1}, 0xffff")
        E(f"  s_mov_b32 s{srd+2}, {nb}")
        E(f"  s_mov_b32 s{srd+3}, 0x00020000")
    so = ["0", f"s{S_T2}", f"s{S_T3}", f"s{S_BASE}"]
    E(f"  buffer_load_dwordx4 {q4(R0)}, v12, s[{S_XSRD}:{S_XSRD+3}], 0 offen")
    for i in range(16):
        E(f"  buffer_load_dwordx4 {q4(TB+4*i)}, v13, s[{S_XSRD}:{S_XSRD+3}], {so[i>>2]} offen offset:{(i&3)*1024}")
    E(f"  v_lshlrev_b32 v{V_KOFF}, 12, v{VCOL}")
    E(f"  v_lshl_add_u32 v{V_KOFF}, v{VG}, 4, v{V_KOFF}")
    E(f"  v_lshlrev_b32 v{V_VOFF}, 14, v{VG}")
    E(f"  v_lshl_add_u32 v{V_VOFF}, v{VCOL}, 4, v{V_VOFF}")
    E(f"  v_mov_b32 v{V_M}, 0xff800000")
    E(f"  v_mov_b32 v{V_L}, 0")
    E(f"  s_waitcnt vmcnt(17)")
    E(f"  v_max_i32 v{VCTX}, 0, v{VCTX}")
    E(f"  v_min_i32 v{VCTX}, 2048, v{VCTX}")
    E(f"  s_cmp_eq_u32 s{S_SH}, 1")
    E(f"  s_cbranch_scc1 L_pro_shared")
    E(f"  s_lshr_b32 s{S_P}, s{S_B}, 1")
    E(f"  s_and_b32 s{S_HALF}, s{S_B}, 1")
    E(f"  v_and_b32 v15, 31, v{VL}")
    E(f"  v_sub_u32 v15, 31, v15")
    E(f"  v_lshl_add_u32 v{VKEY}, v{VCTX}, 5, v15")
    E(f"  ds_write_b32 v14, v{VKEY} offset:{LDS_KEY}")
    E(f"  v_lshrrev_b32 v15, 5, v{VL}")
    E(f"  v_lshlrev_b32 v15, 6, v15")
    E(f"  v_mov_b32 v{VRANK}, 0")
    E(f"  s_waitcnt lgkmcnt(0)")
    for k in range(4):
        E(f"  ds_read_b128 {q4(KB+4*k)}, v15 offset:{LDS_KEY + 16*k}")
    E(f"  s_waitcnt lgkmcnt(0)")
    for bt in range(2):
        for k in range(8):
            E(f"  v_cmp_gt_u32 s[{S_MASK+2*k}:{S_MASK+2*k+1}], v{KB+bt*8+k}, v{VKEY}")
        E(f"  s_nop 1")
        for k in range(8):
            E(f"  v_addc_co_u32 v{VRANK}, vcc, 0, v{VRANK}, s[{S_MASK+2*k}:{S_MASK+2*k+1}]")
    E(f"  v_mov_b32 v15, v{VRANK}")
    E(f"  s_nop 1")
    E(f"  v_permlane32_swap_b32 v{VRANK}, v15")
    E(f"  s_nop 1")
    E(f"  v_add_u32 v{VRANK}, v{VRANK}, v15")
    E(f"  s_sub_u32 s{S_T0}, 31, s{S_P}")
    E(f"  v_cmp_eq_u32 s[{S_MASK}:{S_MASK+1}], s{S_P}, v{VRANK}")
    E(f"  v_cmp_eq_u32 s[{S_MASK+2}:{S_MASK+3}], s{S_T0}, v{VRANK}")
    E(f"  s_nop 3")
    E(f"  s_ff1_i32_b32 s{S_BL}, s{S_MASK}")
    E(f"  s_ff1_i32_b32 s{S_BS}, s{S_MASK+2}")
    if not MOVREL:
        E(f"  s_lshl_b32 s{S_T0}, s{S_BL}, 9")
        E(f"  s_lshl_b32 s{S_T1}, s{S_BS}, 9")
        E(f"  buffer_load_dwordx4 {q4(OWN)}, v12, s[{S_XSRD}:{S_XSRD+3}], s{S_T0} offen")
        E(f"  buffer_load_dwordx4 {q4(OWN2)}, v12, s[{S_XSRD}:{S_XSRD+3}], s{S_T1} offen")
    E(f"  v_readlane_b32 s{S_N1}, v{VCTX}, s{S_BL}")
    E(f"  v_readlane_b32 s{S_N2}, v{VCTX}, s{S_BS}")
    if not MOVREL:
        E(f"  s_waitcnt vmcnt(2)")
    else:
        E(f"  s_waitcnt vmcnt(0)")
        for sb, dst in ((S_BL, OWN), (S_BS, OWN2)):
            E(f"  s_lshr_b32 s{S_T0}, s{sb}, 1")
            E(f"  s_lshl_b32 s{S_T1}, s{S_T0}, 2")
            E(f"  s_and_b32 s{S_T0}, s{sb}, 1")
            E(f"  s_cmp_eq_u32 s{S_T0}, 0")
            E(f"  s_cselect_b64 vcc, -1, 0")
            E(f"  s_set_gpr_idx_on s{S_T1}, gpr_idx(SRC0)")
            for c in range(4):
                E(f"  v_mov_b32 v{dst+c}, v{TB+c}")
            E(f"  s_set_gpr_idx_off")
            for c in range(4):
                E(f"  v_mov_b32 v{24+c}, v{dst+c}")
            E(f"  s_nop 1")
            for c in range(4):
                E(f"  v_permlane32_swap_b32 v{dst+c}, v{24+c}")
            E(f"  s_nop 1")
            for c in range(4):
                E(f"  v_cndmask_b32 v{dst+c}, v{24+c}, v{dst+c}, vcc")
    E(f"  s_branch L_pro_common")
    E(f"L_pro_shared:")
    E(f"  s_lshr_b32 s{S_PART}, s{S_B}, 2")
    E(f"  s_and_b32 s{S_BQ}, s{S_B}, 3")
    E(f"  s_add_u32 s{S_SLOT}, s{S_PART}, 2")
    E(f"  s_lshl_b32 s{S_T0}, s{S_BQ}, 3")
    E(f"  s_mov_b32 s{S_NB}, 0")
    for k in range(8):
        E(f"  s_add_u32 s{S_T1}, s{S_T0}, {k}")
        E(f"  v_readlane_b32 s{S_T2}, v{VCTX}, s{S_T1}")
        E(f"  s_nop 3")
        E(f"  s_max_u32 s{S_NB}, s{S_NB}, s{S_T2}")
    E(f"  s_add_u32 s{S_NB}, s{S_NB}, 15")
    E(f"  s_lshr_b32 s{S_NB}, s{S_NB}, 4")
    E(f"  v_lshrrev_b32 v{VBL}, 1, v{VCOL}")
    E(f"  v_add_u32 v{VBL}, s{S_T0}, v{VBL}")
    E(f"  s_waitcnt vmcnt(0)")
    E(f"L_pro_common:")
    for c in range(4):
        E(f"  v_xor_b32 v{20+c}, v{TB+c}, v{R0+c}")
        for i in range(1, 16):
            E(f"  v_xor_b32 v{TB+4*i+c}, v{TB+4*i+c}, v{R0+c}")
        for i in range(1, 16, 2):
            if i + 1 < 16: E(f"  v_or3_b32 v{20+c}, v{20+c}, v{TB+4*i+c}, v{TB+4*(i+1)+c}")
            else: E(f"  v_or_b32 v{20+c}, v{20+c}, v{TB+4*i+c}")
    for c in range(4):
        E(f"  v_cmp_ne_u32 s[{S_MASK+2*c}:{S_MASK+2*c+1}], 0, v{20+c}")
    E(f"  v_and_b32 v{TB}, 31, v{VL}")
    E(f"  v_lshlrev_b32 v{TB}, 2, v{TB}")
    for c in range(4):
        E(f"  v_add_u32 v{TB+1+c}, {c}, v{TB}")
    for c in range(4):
        E(f"  s_or_b32 s{S_TK+c}, s{S_MASK+2*c}, s{S_MASK+2*c+1}")
    E(f"  s_cmp_eq_u32 s{S_SH}, 1")
    E(f"  s_cbranch_scc1 L_pro_shared2")
    def count(sctx, dst):
        E(f"  s_add_u32 s{sctx}, s{sctx}, 15")
        E(f"  s_lshr_b32 s{sctx}, s{sctx}, 4")
        E(f"  s_mov_b32 s{dst}, 0")
        for c in range(4):
            E(f"  s_add_u32 s{S_T0}, s{sctx}, {3-c}")
            E(f"  s_lshr_b32 s{S_T0}, s{S_T0}, 2")
            E(f"  s_lshl_b64 s[{S_MASK}:{S_MASK+1}], 1, s{S_T0}")
            E(f"  s_sub_u32 s{S_MASK}, s{S_MASK}, 1")
            E(f"  s_and_b32 s{S_MASK}, s{S_MASK}, s{S_TK+c}")
            E(f"  s_bcnt1_i32_b32 s{S_T0}, s{S_MASK}")
            E(f"  s_add_u32 s{dst}, s{dst}, s{S_T0}")
    count(S_N1, S_T2)
    count(S_N2, S_T3)
    E(f"  s_add_u32 s{S_T2}, s{S_T2}, 1")
    E(f"  s_lshr_b32 s{S_T2}, s{S_T2}, 1")
    E(f"  s_add_u32 s{S_T3}, s{S_T3}, 1")
    E(f"  s_lshr_b32 s{S_T3}, s{S_T3}, 1")
    E(f"  s_add_u32 s{S_MASK}, s{S_T2}, 1")
    E(f"  s_lshr_b32 s{S_MASK}, s{S_MASK}, 1")
    E(f"  s_lshr_b32 s{S_MASK+1}, s{S_T3}, 1")
    E(f"  s_sub_u32 s{S_MASK+2}, s{S_T2}, s{S_MASK}")
    E(f"  s_sub_u32 s{S_MASK+3}, s{S_T3}, s{S_MASK+1}")
    E(f"  s_cmp_eq_u32 s{S_HALF}, 0")
    E(f"  s_cselect_b32 s{S_MASK+4}, s{S_MASK}, s{S_MASK+2}")
    E(f"  s_cselect_b32 s{S_MASK+5}, s{S_MASK+1}, s{S_MASK+3}")
    E(f"  s_cselect_b32 s{S_MASK+6}, 0, s{S_MASK}")
    E(f"  s_cselect_b32 s{S_MASK+7}, 0, s{S_MASK+1}")
    E(f"  s_add_u32 s{S_T0}, s{S_MASK+4}, s{S_MASK+5}")
    E(f"  s_mul_i32 s{S_T1}, s{S_MASK+4}, 14")
    E(f"  s_mov_b32 s{S_W1}, 0")
    E(f"  s_mov_b32 s{S_T2}, s{S_T0}")
    for k in range(7):
        E(f"  s_cmp_le_u32 s{S_T2}, s{S_T1}")
        E(f"  s_addc_u32 s{S_W1}, s{S_W1}, 0")
        if k < 6:
            E(f"  s_add_u32 s{S_T2}, s{S_T2}, s{S_T0}")
            E(f"  s_add_u32 s{S_T2}, s{S_T2}, s{S_T0}")
    E(f"  s_cmp_lg_u32 s{S_MASK+4}, 0")
    E(f"  s_cselect_b32 s{S_T2}, 1, 0")
    E(f"  s_max_u32 s{S_W1}, s{S_W1}, s{S_T2}")
    E(f"  s_cmp_lg_u32 s{S_MASK+5}, 0")
    E(f"  s_cselect_b32 s{S_T2}, 6, 7")
    E(f"  s_min_u32 s{S_W1}, s{S_W1}, s{S_T2}")
    E(f"  s_sub_u32 s{S_T0}, s{S_W}, s{S_W1}")
    E(f"  s_sub_u32 s{S_T1}, {NPW}, s{S_W1}")
    E(f"  s_cmp_lt_u32 s{S_W}, s{S_W1}")
    E(f"  s_cselect_b32 s{S_B}, s{S_BL}, s{S_BS}")
    E(f"  s_cselect_b32 s{S_NB}, s{S_N1}, s{S_N2}")
    E(f"  s_cselect_b32 s{S_NSTEP}, s{S_MASK+4}, s{S_MASK+5}")
    E(f"  s_cselect_b32 s{S_ST}, s{S_MASK+6}, s{S_MASK+7}")
    E(f"  s_cselect_b32 s{S_IDX}, s{S_W}, s{S_T0}")
    E(f"  s_cselect_b32 s{S_STRIDE}, s{S_W1}, s{S_T1}")
    E(f"  s_cselect_b32 s{S_LIST}, 0, 1024")
    E(f"  s_cselect_b32 s{S_KVW}, 0, {1 if MIX else 0}")
    E(f"  s_cselect_b64 vcc, -1, 0")
    E(f"  s_xor_b32 s{S_KVW}, s{S_KVW}, s{S_KVH}")
    E(f"  s_lshl_b32 s{S_KVHOFF}, s{S_KVW}, 9")
    E(f"  v_mov_b32 v{VBL}, s{S_B}")
    E(f"  s_waitcnt vmcnt(0)")
    for c in range(4):
        E(f"  v_cndmask_b32 v{OWN+c}, v{OWN2+c}, v{OWN+c}, vcc")
    E(f"  s_mov_b32 s{S_T1}, 0")
    E(f"  s_branch L_pro_common2")
    E(f"L_pro_shared2:")
    for c in range(4):
        E(f"  v_mov_b32 v{OWN+c}, v{R0+c}")
    E(f"  s_mov_b32 s{S_LIST}, 2048")
    E(f"  s_mov_b32 s{S_T1}, -1")
    E(f"  s_mov_b32 s{S_KVW}, s{S_KVH}")
    E(f"L_pro_common2:")
    E(f"  v_and_b32 v14, 1, v{VCOL}")
    E(f"  v_lshl_add_u32 v14, v{VBL}, 4, v14")
    E(f"  s_lshl_b32 s{S_T0}, s{S_KVW}, 1")
    E(f"  v_add_u32 v14, s{S_T0}, v14")
    E(f"  v_lshlrev_b32 v15, 9, v14")
    E(f"  v_lshl_add_u32 v15, v{VG}, 4, v15")
    for i in range(8):
        E(f"  global_load_dwordx4 {q4(V_Q+4*i)}, v15, s[16:17] offset:{i*64}")
    E(f"  v_lshlrev_b32 v14, 2, v{VBL}")
    E(f"  ds_bpermute_b32 v{V_REM}, v14, v{VCTX}")
    for c in range(4):
        E(f"  v_cmp_gt_u32 s[{S_MASK+8+2*c}:{S_MASK+8+2*c+1}], s{S_NB}, v{TB+1+c}")
    E(f"  s_nop 3")
    for c in range(4):
        E(f"  s_xor_b32 s{S_TK+c}, s{S_TK+c}, s{S_T1}")
        E(f"  s_and_b32 s{S_TK+c}, s{S_TK+c}, s{S_MASK+8+2*c}")
    E(f"  s_mov_b32 s{S_N}, 0")
    for c in range(4):
        E(f"  v_mbcnt_lo_u32_b32 v12, s{S_TK+c}, 0")
        E(f"  v_add_u32 v12, s{S_N}, v12")
        E(f"  v_lshlrev_b32 v12, 3, v12")
        E(f"  v_add_u32 v12, s{S_LIST}, v12")
        E(f"  v_mov_b32 v14, v{OWN+c}")
        E(f"  v_lshlrev_b32 v15, 4, v{TB+1+c}")
        E(f"  s_mov_b32 exec_lo, s{S_TK+c}")
        E(f"  s_mov_b32 exec_hi, 0")
        E(f"  ds_write_b64 v12, v[14:15]")
        E(f"  s_mov_b64 exec, -1")
        E(f"  s_bcnt1_i32_b32 s{S_T0}, s{S_TK+c}")
        E(f"  s_add_u32 s{S_N}, s{S_N}, s{S_T0}")
    E(f"  s_cmp_eq_u32 s{S_SH}, 0")
    E(f"  s_cbranch_scc1 L_pro_common3")
    E(f"  s_add_u32 s{S_T0}, s{S_N}, 1")
    E(f"  s_lshr_b32 s{S_T0}, s{S_T0}, 1")
    E(f"  s_lshr_b32 s{S_T1}, s{S_T0}, 3")
    E(f"  s_and_b32 s{S_T2}, s{S_T0}, 7")
    E(f"  s_mul_i32 s{S_ST}, s{S_PART}, s{S_T1}")
    E(f"  s_min_u32 s{S_BASE}, s{S_PART}, s{S_T2}")
    E(f"  s_add_u32 s{S_ST}, s{S_ST}, s{S_BASE}")
    E(f"  s_cmp_lt_u32 s{S_PART}, s{S_T2}")
    E(f"  s_cselect_b32 s{S_BASE}, 1, 0")
    E(f"  s_add_u32 s{S_NSTEP}, s{S_T1}, s{S_BASE}")
    E(f"  s_mov_b32 s{S_IDX}, 0")
    E(f"  s_mov_b32 s{S_STRIDE}, 1")
    E(f"L_pro_common3:")
    E(f"  s_lshl_b32 s{S_T3}, s{S_ST}, 1")
    E(f"  v_add_u32 v12, s{S_T3}, v{VL}")
    E(f"  v_lshlrev_b32 v13, 3, v12")
    E(f"  v_and_b32 v13, 0x3ff, v13")
    E(f"  v_add_u32 v13, s{S_LIST}, v13")
    E(f"  s_waitcnt lgkmcnt(0)")
    E(f"  ds_read_b64 v[14:15], v13")
    E(f"  v_cmp_gt_u32 vcc, s{S_N}, v12")
    E(f"  v_mov_b32 v13, 0x100000")
    E(f"  v_mov_b32 v12, 2112")
    E(f"  s_waitcnt lgkmcnt(0)")
    E(f"  v_cndmask_b32 v{V_PHYS}, v12, v14, vcc")
    E(f"  v_cndmask_b32 v{V_J16}, v13, v15, vcc")
    E(f"  v_lshlrev_b32 v12, 2, v{VG}")
    E(f"  v_sub_u32 v{V_REM}, v{V_REM}, v12")
    E(f"  s_cmp_ge_u32 s{S_IDX}, s{S_NSTEP}")
    E(f"  s_cbranch_scc1 L_zero_o")
    E(f"  s_cmp_eq_u32 s{S_SH}, 1")
    E(f"  s_cbranch_scc1 L_path_sh")
    for tag, nt in (("pr", " nt"), ("sh", "")):
        E(f"L_path_{tag}:")
        emit_next_offsets()
        emit_k_loads(nt)
        emit_v_loads(nt)
        E(f"  s_mov_b32 s{S_JA}, s{S_NJA}")
        E(f"  s_mov_b32 s{S_JB}, s{S_NJB}")
        for r in range(64):
            E(f"  v_mov_b32 v{V_O+r}, 0")
        emit_stamp()
        E(f"L_loop_{tag}:")
        emit_step(nt, tag)
        E(f"  s_cmp_lt_u32 s{S_IDX}, s{S_NSTEP}")
        E(f"  s_cbranch_scc1 L_loop_{tag}")
        E(f"  s_branch L_epilogue")
    E(f"L_zero_o:")
    for r in range(64):
        E(f"  v_mov_b32 v{V_O+r}, 0")
    E(f"L_epilogue:")
    E(f"  s_waitcnt vmcnt(0)")
    E(f"  s_nop 15")
    emit_xreduce(V_L, V_T, "v_add_f32")
    E(f"  v_and_b32 v{VL}, 63, v0")
    E(f"  v_and_b32 v{VCOL}, 15, v0")
    E(f"  v_lshrrev_b32 v{VG}, 4, v{VL}")
    E(f"  s_mov_b32 s{S_XSRD}, s30")
    E(f"  s_and_b32 s{S_XSRD+1}, s31, 0xffff")
    E(f"  s_mov_b32 s{S_XSRD+2}, {WS_BYTES}")
    E(f"  s_mov_b32 s{S_XSRD+3}, 0x00020000")
    lgs = NSLOT.bit_length() - 1
    E(f"  s_cmp_eq_u32 s{S_SH}, 1")
    E(f"  s_cbranch_scc1 L_epi_sh")
    SA = S_MASK
    SBI = S_MASK + 8
    for w in range(NPW):
        E(f"  s_cmp_lt_u32 {w}, s{S_W1}")
        E(f"  s_cselect_b32 s{SA+w}, 1.0, 0")
        E(f"  s_cselect_b32 s{SBI+w}, 0, 0xff800000")
    E(f"  v_lshlrev_b32 v12, 2, v0")
    E(f"  v_lshlrev_b32 v13, 2, v{VL}")
    E(f"  ds_write_b32 v12, v{V_M} offset:{LDS_M}")
    E(f"  s_waitcnt lgkmcnt(0)")
    E(f"  s_barrier")
    for w in range(NPW):
        E(f"  ds_read_b32 v{V_S+w}, v13 offset:{LDS_M + w*256}")
    E(f"  v_mov_b32 v14, 0xff800000")
    E(f"  v_mov_b32 v{V_P}, 0xff800000")
    E(f"  s_waitcnt lgkmcnt(0)")
    for w in range(NPW):
        E(f"  v_add_f32 v15, s{SBI+w}, v{V_S+w}")
        E(f"  v_max_f32 v14, v14, v15")
        E(f"  s_xor_b32 s{S_T0}, s{SBI+w}, 0xff800000")
        E(f"  v_add_f32 v15, s{S_T0}, v{V_S+w}")
        E(f"  v_max_f32 v{V_P}, v{V_P}, v15")
    E(f"  s_cmp_lt_u32 s{S_W}, s{S_W1}")
    E(f"  s_cselect_b64 vcc, -1, 0")
    E(f"  v_cndmask_b32 v15, v{V_P}, v14, vcc")
    E(f"  v_max_f32 v15, 0xff7fffff, v15")
    E(f"  v_mul_f32 v15, s{S_C}, v15")
    E(f"  v_fma_f32 v15, v{V_M}, s{S_C}, -v15")
    E(f"  v_exp_f32 v15, v15")
    E(f"  s_nop 0")
    E(f"  v_mul_f32 v{V_L}, v{V_L}, v15")
    for r in range(64):
        E(f"  v_mul_f32 v{V_O+r}, v{V_O+r}, v15")
    E(f"  ds_write_b32 v12, v{V_L} offset:{LDS_L}")
    E(f"  s_lshl_b32 s{S_T0}, s{S_W}, 11")
    E(f"  v_lshl_add_u32 v15, v{VG}, 1, v{VCOL}")
    E(f"  v_lshlrev_b32 v15, 4, v15")
    E(f"  v_add_u32 v15, s{S_T0}, v15")
    E(f"  v_cmp_gt_u32 vcc, 2, v{VCOL}")
    E(f"  s_nop 4")
    E(f"  s_mov_b64 exec, vcc")
    for qd in range(16):
        E(f"  ds_write_b128 v15, {q4(V_O+4*qd)} offset:{LDS_O + qd*128}")
    E(f"  s_mov_b64 exec, -1")
    E(f"  s_waitcnt lgkmcnt(0)")
    E(f"  s_barrier")
    E(f"  v_lshlrev_b32 v12, 2, v0")
    for w in range(NPW):
        E(f"  ds_read_b32 v{V_S+w}, v12 offset:{LDS_O + w*2048}")
    E(f"  s_cmp_lg_u32 s{S_W}, 0")
    E(f"  s_cbranch_scc1 L_epi_pr1")
    for w in range(NPW):
        E(f"  ds_read_b32 v{V_K+w}, v12 offset:{LDS_O + w*2048 + 448*4}")
    for w in range(NPW):
        E(f"  ds_read_b32 v{V_K+8+w}, v13 offset:{LDS_L + w*256}")
    E(f"L_epi_pr1:")
    def addr(tv, dst):
        E(f"  v_lshrrev_b32 v{V_V}, 5, v{tv}")
        E(f"  v_bfe_u32 v{V_V+1}, v{tv}, 2, 3")
        E(f"  v_and_b32 v{V_V+2}, 3, v{tv}")
        E(f"  v_lshrrev_b32 v{V_V+3}, 3, v{V_V}")
        E(f"  v_lshlrev_b32 v{V_V+3}, 7, v{V_V+3}")
        E(f"  v_and_b32 v{V_V}, 7, v{V_V}")
        E(f"  v_add_u32 v{V_V+3}, v{V_V+3}, v{V_V}")
        E(f"  v_lshl_add_u32 v{V_V+3}, v{V_V+2}, 3, v{V_V+3}")
        E(f"  v_lshrrev_b32 v{V_V}, 1, v{V_V+1}")
        E(f"  v_lshl_add_u32 v{V_V+3}, v{V_V}, 5, v{V_V+3}")
        E(f"  v_and_b32 v{V_V+1}, 1, v{V_V+1}")
        E(f"  v_lshlrev_b32 v{V_V+1}, {lgs+10}, v{V_V+1}")
        E(f"  v_lshl_add_u32 v{dst}, v{V_V+3}, 2, v{V_V+1}")
    for sb, dst in ((S_BL, S_T2), (S_BS, S_T3)):
        E(f"  s_lshl_b32 s{dst}, s{sb}, 4")
        if sb == S_BS and MIX:
            E(f"  s_xor_b32 s{S_T0}, s{S_KVH}, 1")
            E(f"  s_lshl_b32 s{S_T0}, s{S_T0}, 1")
        else:
            E(f"  s_lshl_b32 s{S_T0}, s{S_KVH}, 1")
        E(f"  s_add_u32 s{dst}, s{dst}, s{S_T0}")
        E(f"  s_lshl_b32 s{dst}, s{dst}, {lgs}")
        E(f"  s_add_u32 s{dst}, s{dst}, s{S_HALF}")
        E(f"  s_lshl_b32 s{dst}, s{dst}, 10")
    def twosum(base, da, db):
        E(f"  v_mul_f32 v{da}, s{SA}, v{base}")
        E(f"  v_mov_b32 v{db}, v{base}")
        for w in range(1, NPW):
            E(f"  v_fma_f32 v{da}, v{base+w}, s{SA+w}, v{da}")
            E(f"  v_add_f32 v{db}, v{db}, v{base+w}")
        E(f"  v_sub_f32 v{db}, v{db}, v{da}")
    addr(0, V_V+4)
    E(f"  s_waitcnt lgkmcnt(0)")
    def twosum_exact(base, da, db):
        E(f"  v_mov_b32 v{da}, 0")
        E(f"  v_mov_b32 v{db}, 0")
        for w in range(NPW):
            E(f"  v_fma_f32 v{da}, v{base+w}, s{SA+w}, v{da}")
            E(f"  s_xor_b32 s{S_T0}, s{SA+w}, 0x3f800000")
            E(f"  v_fma_f32 v{db}, v{base+w}, s{S_T0}, v{db}")
    twosum_exact(V_S, V_V+6, V_V+7)
    E(f"  buffer_store_dword v{V_V+6}, v{V_V+4}, s[{S_XSRD}:{S_XSRD+3}], s{S_T2} offen")
    E(f"  buffer_store_dword v{V_V+7}, v{V_V+4}, s[{S_XSRD}:{S_XSRD+3}], s{S_T3} offen")
    E(f"  s_cmp_lg_u32 s{S_W}, 0")
    E(f"  s_cbranch_scc1 L_epi_done")
    E(f"  v_add_u32 v12, 448, v{VL}")
    addr(12, V_V+5)
    twosum_exact(V_K, V_V+8, V_V+9)
    E(f"  buffer_store_dword v{V_V+8}, v{V_V+5}, s[{S_XSRD}:{S_XSRD+3}], s{S_T2} offen")
    E(f"  buffer_store_dword v{V_V+9}, v{V_V+5}, s[{S_XSRD}:{S_XSRD+3}], s{S_T3} offen")
    twosum_exact(V_K+8, 15, V_P+1)
    E(f"  v_lshlrev_b32 v12, {lgs+3}, v{VL}")
    E(f"  s_lshr_b32 s{S_T2}, s{S_T2}, 7")
    E(f"  s_lshr_b32 s{S_T3}, s{S_T3}, 7")
    E(f"  s_add_u32 s{S_T2}, s{S_T2}, {WS_ML_OFF}")
    E(f"  s_add_u32 s{S_T3}, s{S_T3}, {WS_ML_OFF}")
    E(f"  s_mov_b64 exec, 3")
    E(f"  buffer_store_dwordx2 v[14:15], v12, s[{S_XSRD}:{S_XSRD+3}], s{S_T2} offen")
    E(f"  buffer_store_dwordx2 v[{V_P}:{V_P+1}], v12, s[{S_XSRD}:{S_XSRD+3}], s{S_T3} offen")
    E(f"  s_branch L_epi_done")
    E(f"L_epi_sh:")
    E(f"  v_lshrrev_b32 v{VBL}, 1, v{VCOL}")
    E(f"  s_lshl_b32 s{S_T0}, s{S_BQ}, 3")
    E(f"  v_add_u32 v{VBL}, s{S_T0}, v{VBL}")
    E(f"  v_and_b32 v14, 1, v{VCOL}")
    E(f"  v_lshl_add_u32 v14, v{VBL}, 4, v14")
    E(f"  s_lshl_b32 s{S_T0}, s{S_KVH}, 1")
    E(f"  v_add_u32 v14, s{S_T0}, v14")
    E(f"  v_lshlrev_b32 v14, {lgs}, v14")
    E(f"  v_add_u32 v14, s{S_SLOT}, v14")
    E(f"  v_lshlrev_b32 v15, 10, v14")
    E(f"  v_lshl_add_u32 v15, v{VG}, 7, v15")
    E(f"  v_lshlrev_b32 v14, 3, v14")
    E(f"  v_add_u32 v14, {WS_ML_OFF}, v14")
    for hf in range(2):
        for r in range(4):
            base = V_K + (hf*4 + r) * 8
            for jj in range(8):
                E(f"  v_mov_b32 v{base+jj}, v{oreg(hf,jj)+r}")
    for hf in range(2):
        for r in range(4):
            base = V_K + (hf*4 + r) * 8
            for half in range(2):
                E(f"  buffer_store_dwordx4 {q4(base+4*half)}, v15, s[{S_XSRD}:{S_XSRD+3}], 0 offen offset:{hf*512 + r*32 + half*16}")
    E(f"  v_mov_b32 v12, v{V_M}")
    E(f"  v_mov_b32 v13, v{V_L}")
    E(f"  s_mov_b64 exec, 0xffff")
    E(f"  buffer_store_dwordx2 v[12:13], v14, s[{S_XSRD}:{S_XSRD+3}], 0 offen")
    E(f"  s_mov_b64 exec, -1")
    E(f"  s_barrier")
    E(f"  s_barrier")
    E(f"L_epi_done:")
    if STAMP:
        emit_stamp()
        E(f"  s_mov_b64 exec, -1")
        E(f"  s_lshl_b32 s99, s2, 3")
        E(f"  s_add_u32 s99, s99, s{S_W}")
        E(f"  s_lshl_b32 s99, s99, 8")
        E(f"  s_add_u32 s99, s99, 0xa00000")
        E(f"  v_and_b32 v253, 63, v0")
        E(f"  v_lshlrev_b32 v253, 2, v253")
        E(f"  v_add_u32 v253, s99, v253")
        E(f"  global_store_dword v253, v252, s[30:31]")
    E(f"L_main_end:")
    E(f"  s_endpgm")

def combine_kernel():
    MASKRAW = -998244352.0 * 16.0
    E(f".globl combine_kernel")
    E(f".p2align 8")
    E(f".type combine_kernel,@function")
    E(f"combine_kernel:")
    E(f"  s_cmp_ge_u32 s2, 128")
    E(f"  s_cbranch_scc1 L_cmb_end")
    E(f"  s_load_dwordx16 s[16:31], s[0:1], 0")
    E(f"  v_lshrrev_b32 v1, 6, v0")
    E(f"  v_and_b32 v2, 63, v0")
    E(f"  s_nop 0")
    E(f"  v_readfirstlane_b32 s3, v1")
    E(f"  s_lshl_b32 s4, s2, 2")
    E(f"  s_nop 2")
    E(f"  s_add_u32 s4, s4, s3")
    E(f"  s_mov_b32 s56, {f2u(C_SCALE):#x}")
    E(f"  s_waitcnt lgkmcnt(0)")
    E(f"  s_lshl_b32 s5, s4, {(NSLOT*8).bit_length()-1}")
    E(f"  s_add_u32 s5, s5, {WS_ML_OFF}")
    E(f"  s_load_dwordx16 s[32:47], s[30:31], s5")
    E(f"  s_add_u32 s5, s5, 64")
    E(f"  s_load_dwordx4 s[48:51], s[30:31], s5")
    E(f"  s_lshr_b32 s6, s4, 4")
    E(f"  s_lshl_b32 s7, s6, 2")
    E(f"  s_load_dword s52, s[24:25], s7")
    E(f"  s_mov_b32 s8, s30")
    E(f"  s_and_b32 s9, s31, 0xffff")
    E(f"  s_mov_b32 s10, {WS_BYTES}")
    E(f"  s_mov_b32 s11, 0x00020000")
    E(f"  s_lshl_b32 s12, s4, {10 + NSLOT.bit_length()-1}")
    E(f"  s_add_u32 s13, s12, 4096")
    E(f"  s_add_u32 s14, s12, 8192")
    E(f"  v_lshlrev_b32 v3, 4, v2")
    for s in range(NUSED):
        E(f"  buffer_load_dwordx4 v[{8+4*s}:{11+4*s}], v3, s[8:11], s{12 + (s>>2)} offen offset:{(s&3)*1024}")
    E(f"  s_waitcnt lgkmcnt(0)")
    E(f"  v_mov_b32 v4, s32")
    for s in range(1, NUSED):
        E(f"  v_max_f32 v4, s{32+2*s}, v4")
    E(f"  s_max_i32 s52, s52, 0")
    E(f"  s_min_i32 s52, s52, 2048")
    E(f"  s_sub_u32 s53, 2048, s52")
    E(f"  s_mov_b32 s54, 0")
    E(f"  s_cmp_eq_u32 s53, 0")
    E(f"  s_cbranch_scc1 L_cmb_fast")
    E(f"  v_cmp_gt_f32 vcc, {f2u(MASKRAW + 2048.0):#x}, v4")
    E(f"  s_nop 4")
    E(f"  s_cbranch_vccz L_cmb_fast")
    E(f"  s_mov_b32 s54, 1")
    E(f"  v_max_f32 v4, {f2u(MASKRAW):#x}, v4")
    E(f"L_cmb_fast:")
    E(f"  v_max_f32 v4, 0xff7fffff, v4")
    E(f"  v_mul_f32 v5, s56, v4")
    E(f"  v_mov_b32 v6, 0")
    A = 48
    assert 8 + 4*NUSED <= A
    for k in range(4):
        E(f"  v_mov_b32 v{A+k}, 0")
    E(f"  s_waitcnt vmcnt(0)")
    for s in range(NUSED):
        E(f"  v_mov_b32 v7, s{32+2*s}")
        E(f"  v_fma_f32 v7, v7, s56, -v5")
        E(f"  v_exp_f32 v7, v7")
        E(f"  s_nop 0")
        E(f"  v_fma_f32 v6, v7, s{33+2*s}, v6")
        for k in range(4):
            E(f"  v_fma_f32 v{A+k}, v7, v{8+4*s+k}, v{A+k}")
    E(f"  s_cmp_eq_u32 s54, 0")
    E(f"  s_cbranch_scc1 L_cmb_out")
    E(f"  v_mov_b32 v7, {f2u(MASKRAW):#x}")
    E(f"  v_fma_f32 v7, v7, s56, -v5")
    E(f"  v_exp_f32 v7, v7")
    E(f"  v_cvt_f32_u32 v52, s53")
    E(f"  v_fma_f32 v6, v7, v52, v6")
    E(f"  s_mov_b32 s8, s20")
    E(f"  s_and_b32 s9, s21, 0xffff")
    E(f"  s_mov_b32 s10, {KV_BYTES}")
    E(f"  s_mov_b32 s11, 0x00020000")
    E(f"  s_and_b32 s13, s4, 15")
    E(f"  s_lshr_b32 s13, s13, 1")
    E(f"  s_lshl_b32 s13, s13, 9")
    E(f"  v_lshlrev_b32 v3, 3, v2")
    for k in range(4):
        E(f"  v_mov_b32 v{54+k}, 0")
    E(f"L_cmb_slow:")
    E(f"  s_lshr_b32 s14, s52, 4")
    E(f"  s_lshl_b32 s14, s14, 2")
    E(f"  s_lshl_b32 s15, s6, 9")
    E(f"  s_add_u32 s14, s14, s15")
    E(f"  s_load_dword s15, s[22:23], s14")
    E(f"  s_waitcnt lgkmcnt(0)")
    E(f"  s_lshl_b32 s15, s15, 16")
    E(f"  s_and_b32 s14, s52, 15")
    E(f"  s_lshl_b32 s14, s14, 12")
    E(f"  s_add_u32 s15, s15, s14")
    E(f"  s_add_u32 s15, s15, s13")
    E(f"  buffer_load_dwordx2 v[58:59], v3, s[8:11], s15 offen")
    E(f"  s_waitcnt vmcnt(0)")
    E(f"  v_lshlrev_b32 v60, 16, v58")
    E(f"  v_and_b32 v61, 0xffff0000, v58")
    E(f"  v_lshlrev_b32 v62, 16, v59")
    E(f"  v_and_b32 v63, 0xffff0000, v59")
    for k in range(4):
        E(f"  v_add_f32 v{54+k}, v{54+k}, v{60+k}")
    E(f"  s_add_u32 s52, s52, 1")
    E(f"  s_cmp_lt_u32 s52, 2048")
    E(f"  s_cbranch_scc1 L_cmb_slow")
    for k in range(4):
        E(f"  v_fma_f32 v{A+k}, v7, v{54+k}, v{A+k}")
    E(f"L_cmb_out:")
    E(f"  v_rcp_f32 v6, v6")
    E(f"  s_nop 0")
    for k in range(4):
        E(f"  v_mul_f32 v{A+k}, v{A+k}, v6")
    E(f"  v_cvt_pk_bf16_f32 v52, v{A}, v{A+1}")
    E(f"  v_cvt_pk_bf16_f32 v53, v{A+2}, v{A+3}")
    E(f"  s_mov_b32 s8, s26")
    E(f"  s_and_b32 s9, s27, 0xffff")
    E(f"  s_mov_b32 s10, {512*512}")
    E(f"  s_mov_b32 s11, 0x00020000")
    E(f"  s_lshl_b32 s12, s4, 9")
    E(f"  v_lshlrev_b32 v3, 3, v2")
    E(f"  buffer_store_dwordx2 v[52:53], v3, s[8:11], s12 offen")
    E(f"L_cmb_end:")
    E(f"  s_endpgm")

def kd(name, vgpr, sgpr):
    E(f".amdhsa_kernel {name}")
    E(f"  .amdhsa_next_free_vgpr {vgpr}")
    E(f"  .amdhsa_next_free_sgpr {sgpr}")
    E(f"  .amdhsa_accum_offset {(vgpr+3)//4*4}")
    E(f"  .amdhsa_group_segment_fixed_size 0")
    E(f"  .amdhsa_kernarg_size 64")
    E(f"  .amdhsa_user_sgpr_count 2")
    E(f"  .amdhsa_user_sgpr_kernarg_segment_ptr 1")
    E(f"  .amdhsa_system_sgpr_workgroup_id_x 1")
    E(f"  .amdhsa_float_denorm_mode_32 3")
    E(f".end_amdhsa_kernel")

hdr = open("cdna_kernels/" + NAME + ".s.ref").read().split("; Override launch")[0]
E(hdr.rstrip())
E(f"; @launch kernel={NAME}_kernel grid=({NWG},1,1) block=({NW*64},1,1) lds={LDS_BYTES}")
E(f"; @launch kernel=combine_kernel grid=(128,1,1) block=(256,1,1) lds=0")
E('.amdgcn_target "amdgcn-amd-amdhsa--gfx950"')
E(".text")
main_kernel()
combine_kernel()
E('.section .rodata,"a"')
E(".p2align 6")
kd(f"{NAME}_kernel", V_END, S_END)
E(".p2align 6")
kd("combine_kernel", 64, 60)
open(sys.argv[1] if len(sys.argv) > 1 else "cdna_kernels/" + NAME + ".s", "w").write("\n".join(out) + "\n")
```

```python
import sys, os, struct
STAMP = int(os.environ.get('STAMP', '0'))
SHFIRST = int(os.environ.get('SHFIRST', '0'))
MIX = int(os.environ.get('MIX', '2'))
MOVREL = int(os.environ.get('MOVREL', '1'))
ROT = int(os.environ.get('ROT', '0'))
NAME = "standalone__paged_block_table_kv_radixattention__sampling"
NW = 8
NPW = 7
NWG = 256
SH_PARTS = 8
NSLOT = 16
NUSED = 10
WS_O_BYTES = 512 * NSLOT * 1024
WS_ML_OFF = WS_O_BYTES
WS_BYTES = WS_O_BYTES + 512 * NSLOT * 8
KV_BYTES = 2112 * 65536
C_SCALE = 0.0625 * 1.4426950408889634
LDS_LIST = 0
LDS_M = 3072
LDS_L = 5120
LDS_KEY = 7168
LDS_O = 7424
LDS_BYTES = LDS_O + NPW * 2048

def f2u(f):
    return struct.unpack("<I", struct.pack("<f", f))[0]
out = []
def E(s=""):
    out.append(s)

V_KOFF, V_VOFF, V_PHYS, V_J16, V_REM, V_M, V_L = 1, 2, 3, 4, 5, 6, 7
V_T = 8; V_S = 16; V_P = 24; V_Q = 28; V_O = 60; V_K = 124; V_V = 188
V_END = 256 if STAMP else 252
S_KSRD, S_VSRD, S_XSRD = 4, 8, 12
S_ARG = 16
S_W, S_KVH, S_SH, S_BQ, S_KVHOFF = 32, 33, 34, 35, 36
S_NSTEP, S_IDX, S_JA, S_JB = 37, 38, 39, 40
S_OFFA, S_OFFB = 41, 42
S_B = 43
S_VO = 44
S_C, S_SELLO, S_SELHI = 52, 53, 54
S_T0, S_T1, S_T2, S_T3 = 55, 56, 57, 58
S_LIST = 59
S_MASK = 60
S_CTX8 = 76
S_NJA, S_NJB, S_N = 84, 85, 86
S_TK = 88
S_BASE, S_PART, S_SLOT = 92, 93, 94
S_BL, S_BS, S_W1, S_HALF, S_P, S_N1, S_N2, S_ST = 76, 77, 78, 79, 80, 81, 82, 83
S_NB, S_STRIDE = 87, 95
S_KVW = 3
S_END = 102 if STAMP else 96

def kreg(tile, i): return V_K + tile * 32 + i * 4
def vreg(tile, e, hf): return V_V + ((tile * 4 + e) * 2 + hf) * 4
def oreg(hf, jj): return V_O + (hf * 8 + jj) * 4
def q4(r): return f"v[{r}:{r+3}]"

def emit_stamp():
    if not STAMP: return
    E(f"  s_memrealtime s[96:97]")
    E(f"  s_waitcnt lgkmcnt(0)")
    E(f"  s_mov_b32 m0, s98")
    E(f"  s_nop 0")
    E(f"  v_writelane_b32 v252, s96, m0")
    E(f"  s_add_u32 s98, s98, 1")
    E(f"  s_and_b32 s98, s98, 63")

def emit_next_offsets():
    E(f"  s_lshl_b32 s{S_T0}, s{S_IDX}, 1")
    E(f"  s_and_b32 s{S_T0}, s{S_T0}, 63")
    E(f"  s_add_u32 s{S_T1}, s{S_T0}, 1")
    E(f"  v_readlane_b32 s{S_OFFA}, v{V_PHYS}, s{S_T0}")
    E(f"  v_readlane_b32 s{S_OFFB}, v{V_PHYS}, s{S_T1}")
    E(f"  v_readlane_b32 s{S_NJA}, v{V_J16}, s{S_T0}")
    E(f"  v_readlane_b32 s{S_NJB}, v{V_J16}, s{S_T1}")
    E(f"  s_cmp_lt_u32 s{S_IDX}, s{S_NSTEP}")
    E(f"  s_nop 2")
    E(f"  s_cselect_b32 s{S_OFFA}, s{S_OFFA}, 2112")
    E(f"  s_cselect_b32 s{S_OFFB}, s{S_OFFB}, 2112")
    E(f"  s_lshl_b32 s{S_OFFA}, s{S_OFFA}, 16")
    E(f"  s_lshl_b32 s{S_OFFB}, s{S_OFFB}, 16")
    E(f"  s_add_u32 s{S_OFFA}, s{S_OFFA}, s{S_KVHOFF}")
    E(f"  s_add_u32 s{S_OFFB}, s{S_OFFB}, s{S_KVHOFF}")
    for t, so in ((0, S_OFFA), (1, S_OFFB)):
        for e in range(4):
            if e == 0: E(f"  s_mov_b32 s{S_VO + t*4}, s{so}")
            else: E(f"  s_add_u32 s{S_VO + t*4 + e}, s{so}, {e*4096}")

def emit_k_loads(nt):
    for t, so in ((0, S_OFFA), (1, S_OFFB)):
        for i in range(8):
            E(f"  buffer_load_dwordx4 {q4(kreg(t,i))}, v{V_KOFF}, s[{S_KSRD}:{S_KSRD+3}], s{so} offen offset:{i*64}{nt}")

def emit_v_loads(nt):
    for t in range(2):
        for e in range(4):
            for hf in range(2):
                E(f"  buffer_load_dwordx4 {q4(vreg(t,e,hf))}, v{V_VOFF}, s[{S_VSRD}:{S_VSRD+3}], s{S_VO+t*4+e} offen offset:{hf*256}{nt}")

def emit_xreduce(reg, tmp, op):
    E(f"  v_mov_b32 v{tmp}, v{reg}")
    E(f"  s_nop 1")
    E(f"  v_permlane32_swap_b32 v{reg}, v{tmp}")
    E(f"  s_nop 1")
    E(f"  {op} v{reg}, v{reg}, v{tmp}")
    E(f"  v_mov_b32 v{tmp}, v{reg}")
    E(f"  s_nop 1")
    E(f"  v_permlane16_swap_b32 v{reg}, v{tmp}")
    E(f"  s_nop 1")
    E(f"  {op} v{reg}, v{reg}, v{tmp}")

def emit_step(nt, tag):
    SA, SB = V_S, V_S + 4
    E(f"  s_waitcnt vmcnt(16)")
    emit_stamp()
    for i in range(8):
        for t, sr in ((0, SA), (1, SB)):
            c = "0" if i == 0 else q4(sr)
            E(f"  v_mfma_f32_16x16x32_bf16 {q4(sr)}, {q4(kreg(t,i))}, {q4(V_Q+4*i)}, {c}")
    E(f"  s_add_u32 s{S_IDX}, s{S_IDX}, s{S_STRIDE}")
    emit_next_offsets()
    emit_k_loads(nt)
    E(f"  v_subrev_u32 v{V_T}, s{S_JA}, v{V_REM}")
    E(f"  v_subrev_u32 v{V_T+1}, s{S_JB}, v{V_REM}")
    for r in range(4):
        E(f"  v_cmp_gt_i32 s[{S_MASK+2*r}:{S_MASK+2*r+1}], v{V_T}, {r}")
    for r in range(4):
        E(f"  v_cmp_gt_i32 s[{S_MASK+8+2*r}:{S_MASK+8+2*r+1}], v{V_T+1}, {r}")
    E(f"  v_mov_b32 v{V_T+2}, 0xff800000")
    E(f"  s_nop 1")
    for r in range(8):
        E(f"  v_cndmask_b32 v{V_S+r}, v{V_T+2}, v{V_S+r}, s[{S_MASK+2*r}:{S_MASK+2*r+1}]")
    E(f"  v_max3_f32 v{V_T}, v{V_S}, v{V_S+1}, v{V_S+2}")
    E(f"  v_max3_f32 v{V_T+1}, v{V_S+3}, v{V_S+4}, v{V_S+5}")
    E(f"  v_max3_f32 v{V_T}, v{V_S+6}, v{V_S+7}, v{V_T}")
    E(f"  v_max_f32 v{V_T}, v{V_T}, v{V_T+1}")
    emit_xreduce(V_T, V_T+1, "v_max_f32")
    E(f"  v_max_f32 v{V_T}, v{V_M}, v{V_T}")
    E(f"  v_max_f32 v{V_T+1}, 0xff7fffff, v{V_T}")
    E(f"  v_mul_f32 v{V_T+1}, s{S_C}, v{V_T+1}")
    E(f"  v_fma_f32 v{V_T+2}, v{V_M}, s{S_C}, -v{V_T+1}")
    E(f"  v_exp_f32 v{V_T+2}, v{V_T+2}")
    E(f"  v_mov_b32 v{V_M}, v{V_T}")
    for r in range(8):
        E(f"  v_fma_f32 v{V_S+r}, v{V_S+r}, s{S_C}, -v{V_T+1}")
    for r in range(8):
        E(f"  v_exp_f32 v{V_S+r}, v{V_S+r}")
    E(f"  v_cmp_neq_f32 vcc, 1.0, v{V_T+2}")
    E(f"  v_mul_f32 v{V_L}, v{V_L}, v{V_T+2}")
    E(f"  v_add_f32 v{V_T+3}, v{V_S}, v{V_S+1}")
    E(f"  v_add_f32 v{V_T+4}, v{V_S+2}, v{V_S+3}")
    E(f"  v_add_f32 v{V_T+5}, v{V_S+4}, v{V_S+5}")
    E(f"  v_add_f32 v{V_T+6}, v{V_S+6}, v{V_S+7}")
    E(f"  v_add_f32 v{V_T+3}, v{V_T+3}, v{V_T+4}")
    E(f"  v_add_f32 v{V_T+5}, v{V_T+5}, v{V_T+6}")
    E(f"  v_add_f32 v{V_T+3}, v{V_T+3}, v{V_T+5}")
    E(f"  v_add_f32 v{V_L}, v{V_L}, v{V_T+3}")
    for k in range(4):
        E(f"  v_cvt_pk_bf16_f32 v{V_P+k}, v{V_S+2*k}, v{V_S+2*k+1}")
    E(f"  s_cbranch_vccz L_noscale_{tag}")
    for r in range(64):
        E(f"  v_mul_f32 v{V_O+r}, v{V_O+r}, v{V_T+2}")
    E(f"L_noscale_{tag}:")
    E(f"  s_waitcnt vmcnt(16)")
    emit_stamp()
    n = 0
    for hf in range(2):
        for jj in range(8):
            tq = V_T + (n & 1) * 4
            sel = S_SELHI if (jj & 1) else S_SELLO
            w = jj >> 1
            for t in range(2):
                for pp in range(2):
                    lo = vreg(t, 2*pp, hf) + w
                    hi = vreg(t, 2*pp+1, hf) + w
                    E(f"  v_perm_b32 v{tq + t*2 + pp}, v{hi}, v{lo}, s{sel}")
            E(f"  s_nop 1")
            E(f"  v_mfma_f32_16x16x32_bf16 {q4(oreg(hf,jj))}, {q4(tq)}, {q4(V_P)}, {q4(oreg(hf,jj))}")
            n += 1
    emit_v_loads(nt)
    E(f"  s_mov_b32 s{S_JA}, s{S_NJA}")
    E(f"  s_mov_b32 s{S_JB}, s{S_NJB}")

def main_kernel():
    E(f".globl {NAME}_kernel")
    E(f".p2align 8")
    E(f".type {NAME}_kernel,@function")
    E(f"{NAME}_kernel:")
    E(f"  s_cmp_ge_u32 s2, {NWG}")
    E(f"  s_cbranch_scc1 L_main_end")
    if STAMP:
        E(f"  s_mov_b32 s98, 0")
        E(f"  v_mov_b32 v252, 0")
    emit_stamp()
    E(f"  s_load_dwordx16 s[{S_ARG}:{S_ARG+15}], s[0:1], 0")
    VL, VCOL, VG, VBL = 8, 9, 10, 11
    VCTX, VKEY, VRANK = 16, 17, 18
    KB = V_Q
    TB = V_K; R0 = V_K + 64; OWN = V_K + 68; OWN2 = V_K + 72
    if SHFIRST:
        E(f"  v_add_u32 v0, 448, v0")
        E(f"  v_and_b32 v0, 511, v0")
    E(f"  v_and_b32 v{VL}, 63, v0")
    E(f"  v_lshrrev_b32 v12, 6, v0")
    E(f"  v_and_b32 v{VCOL}, 15, v0")
    E(f"  v_readfirstlane_b32 s{S_W}, v12")
    E(f"  v_lshrrev_b32 v{VG}, 4, v{VL}")
    E(f"  s_lshr_b32 s{S_B}, s2, 3")
    if ROT:
        E(f"  s_add_u32 s{S_KVH}, s2, s{S_B}")
        E(f"  s_and_b32 s{S_KVH}, s{S_KVH}, 7")
    else:
        E(f"  s_and_b32 s{S_KVH}, s2, 7")
    E(f"  s_lshl_b32 s{S_KVHOFF}, s{S_KVH}, 9")
    E(f"  s_mov_b32 s{S_C}, {f2u(C_SCALE):#x}")
    E(f"  s_mov_b32 s{S_SELLO}, 0x05040100")
    E(f"  s_mov_b32 s{S_SELHI}, 0x07060302")
    E(f"  v_and_b32 v12, 31, v{VL}")
    E(f"  v_lshlrev_b32 v14, 2, v12")
    E(f"  v_lshlrev_b32 v12, 4, v12")
    E(f"  v_lshrrev_b32 v13, 5, v{VL}")
    E(f"  v_lshl_add_u32 v13, v13, 9, v12")
    E(f"  s_mov_b32 s{S_T2}, 4096")
    E(f"  s_mov_b32 s{S_T3}, 8192")
    E(f"  s_mov_b32 s{S_BASE}, 12288")
    E(f"  s_cmp_eq_u32 s{S_W}, {NPW}")
    E(f"  s_cselect_b32 s{S_SH}, 1, 0")
    E(f"  s_waitcnt lgkmcnt(0)")
    E(f"  global_load_dword v{VCTX}, v14, s[24:25]")
    for srd, lo, nb in ((S_XSRD, 22, 16384), (S_KSRD, 18, KV_BYTES), (S_VSRD, 20, KV_BYTES)):
        E(f"  s_mov_b32 s{srd}, s{lo}")
        E(f"  s_and_b32 s{srd+1}, s{lo+1}, 0xffff")
        E(f"  s_mov_b32 s{srd+2}, {nb}")
        E(f"  s_mov_b32 s{srd+3}, 0x00020000")
    so = ["0", f"s{S_T2}", f"s{S_T3}", f"s{S_BASE}"]
    E(f"  buffer_load_dwordx4 {q4(R0)}, v12, s[{S_XSRD}:{S_XSRD+3}], 0 offen")
    for i in range(16):
        E(f"  buffer_load_dwordx4 {q4(TB+4*i)}, v13, s[{S_XSRD}:{S_XSRD+3}], {so[i>>2]} offen offset:{(i&3)*1024}")
    E(f"  v_lshlrev_b32 v{V_KOFF}, 12, v{VCOL}")
    E(f"  v_lshl_add_u32 v{V_KOFF}, v{VG}, 4, v{V_KOFF}")
    E(f"  v_lshlrev_b32 v{V_VOFF}, 14, v{VG}")
    E(f"  v_lshl_add_u32 v{V_VOFF}, v{VCOL}, 4, v{V_VOFF}")
    E(f"  v_mov_b32 v{V_M}, 0xff800000")
    E(f"  v_mov_b32 v{V_L}, 0")
    E(f"  s_waitcnt vmcnt(17)")
    E(f"  v_max_i32 v{VCTX}, 0, v{VCTX}")
    E(f"  v_min_i32 v{VCTX}, 2048, v{VCTX}")
    E(f"  s_cmp_eq_u32 s{S_SH}, 1")
    E(f"  s_cbranch_scc1 L_pro_shared")
    E(f"  s_lshr_b32 s{S_P}, s{S_B}, 1")
    E(f"  s_and_b32 s{S_HALF}, s{S_B}, 1")
    E(f"  v_and_b32 v15, 31, v{VL}")
    E(f"  v_sub_u32 v15, 31, v15")
    E(f"  v_lshl_add_u32 v{VKEY}, v{VCTX}, 5, v15")
    E(f"  ds_write_b32 v14, v{VKEY} offset:{LDS_KEY}")
    E(f"  v_lshrrev_b32 v15, 5, v{VL}")
    E(f"  v_lshlrev_b32 v15, 6, v15")
    E(f"  v_mov_b32 v{VRANK}, 0")
    E(f"  s_waitcnt lgkmcnt(0)")
    for k in range(4):
        E(f"  ds_read_b128 {q4(KB+4*k)}, v15 offset:{LDS_KEY + 16*k}")
    E(f"  s_waitcnt lgkmcnt(0)")
    for bt in range(2):
        for k in range(8):
            E(f"  v_cmp_gt_u32 s[{S_MASK+2*k}:{S_MASK+2*k+1}], v{KB+bt*8+k}, v{VKEY}")
        E(f"  s_nop 1")
        for k in range(8):
            E(f"  v_addc_co_u32 v{VRANK}, vcc, 0, v{VRANK}, s[{S_MASK+2*k}:{S_MASK+2*k+1}]")
    E(f"  v_mov_b32 v15, v{VRANK}")
    E(f"  s_nop 1")
    E(f"  v_permlane32_swap_b32 v{VRANK}, v15")
    E(f"  s_nop 1")
    E(f"  v_add_u32 v{VRANK}, v{VRANK}, v15")
    E(f"  s_sub_u32 s{S_T0}, 31, s{S_P}")
    E(f"  v_cmp_eq_u32 s[{S_MASK}:{S_MASK+1}], s{S_P}, v{VRANK}")
    E(f"  v_cmp_eq_u32 s[{S_MASK+2}:{S_MASK+3}], s{S_T0}, v{VRANK}")
    E(f"  s_nop 3")
    E(f"  s_ff1_i32_b32 s{S_BL}, s{S_MASK}")
    E(f"  s_ff1_i32_b32 s{S_BS}, s{S_MASK+2}")
    if not MOVREL:
        E(f"  s_lshl_b32 s{S_T0}, s{S_BL}, 9")
        E(f"  s_lshl_b32 s{S_T1}, s{S_BS}, 9")
        E(f"  buffer_load_dwordx4 {q4(OWN)}, v12, s[{S_XSRD}:{S_XSRD+3}], s{S_T0} offen")
        E(f"  buffer_load_dwordx4 {q4(OWN2)}, v12, s[{S_XSRD}:{S_XSRD+3}], s{S_T1} offen")
    E(f"  v_readlane_b32 s{S_N1}, v{VCTX}, s{S_BL}")
    E(f"  v_readlane_b32 s{S_N2}, v{VCTX}, s{S_BS}")
    if not MOVREL:
        E(f"  s_waitcnt vmcnt(2)")
    else:
        E(f"  s_waitcnt vmcnt(0)")
        for sb, dst in ((S_BL, OWN), (S_BS, OWN2)):
            E(f"  s_lshr_b32 s{S_T0}, s{sb}, 1")
            E(f"  s_lshl_b32 s{S_T1}, s{S_T0}, 2")
            E(f"  s_and_b32 s{S_T0}, s{sb}, 1")
            E(f"  s_cmp_eq_u32 s{S_T0}, 0")
            E(f"  s_cselect_b64 vcc, -1, 0")
            E(f"  s_set_gpr_idx_on s{S_T1}, gpr_idx(SRC0)")
            for c in range(4):
                E(f"  v_mov_b32 v{dst+c}, v{TB+c}")
            E(f"  s_set_gpr_idx_off")
            for c in range(4):
                E(f"  v_mov_b32 v{24+c}, v{dst+c}")
            E(f"  s_nop 1")
            for c in range(4):
                E(f"  v_permlane32_swap_b32 v{dst+c}, v{24+c}")
            E(f"  s_nop 1")
            for c in range(4):
                E(f"  v_cndmask_b32 v{dst+c}, v{24+c}, v{dst+c}, vcc")
    E(f"  s_branch L_pro_common")
    E(f"L_pro_shared:")
    E(f"  s_lshr_b32 s{S_PART}, s{S_B}, 2")
    E(f"  s_and_b32 s{S_BQ}, s{S_B}, 3")
    E(f"  s_add_u32 s{S_SLOT}, s{S_PART}, 2")
    E(f"  s_lshl_b32 s{S_T0}, s{S_BQ}, 3")
    E(f"  s_mov_b32 s{S_NB}, 0")
    for k in range(8):
        E(f"  s_add_u32 s{S_T1}, s{S_T0}, {k}")
        E(f"  v_readlane_b32 s{S_T2}, v{VCTX}, s{S_T1}")
        E(f"  s_nop 3")
        E(f"  s_max_u32 s{S_NB}, s{S_NB}, s{S_T2}")
    E(f"  s_add_u32 s{S_NB}, s{S_NB}, 15")
    E(f"  s_lshr_b32 s{S_NB}, s{S_NB}, 4")
    E(f"  v_lshrrev_b32 v{VBL}, 1, v{VCOL}")
    E(f"  v_add_u32 v{VBL}, s{S_T0}, v{VBL}")
    E(f"  s_waitcnt vmcnt(0)")
    E(f"L_pro_common:")
    for c in range(4):
        E(f"  v_xor_b32 v{20+c}, v{TB+c}, v{R0+c}")
        for i in range(1, 16):
            E(f"  v_xor_b32 v{TB+4*i+c}, v{TB+4*i+c}, v{R0+c}")
        for i in range(1, 16, 2):
            if i + 1 < 16: E(f"  v_or3_b32 v{20+c}, v{20+c}, v{TB+4*i+c}, v{TB+4*(i+1)+c}")
            else: E(f"  v_or_b32 v{20+c}, v{20+c}, v{TB+4*i+c}")
    for c in range(4):
        E(f"  v_cmp_ne_u32 s[{S_MASK+2*c}:{S_MASK+2*c+1}], 0, v{20+c}")
    E(f"  v_and_b32 v{TB}, 31, v{VL}")
    E(f"  v_lshlrev_b32 v{TB}, 2, v{TB}")
    for c in range(4):
        E(f"  v_add_u32 v{TB+1+c}, {c}, v{TB}")
    for c in range(4):
        E(f"  s_or_b32 s{S_TK+c}, s{S_MASK+2*c}, s{S_MASK+2*c+1}")
    E(f"  s_cmp_eq_u32 s{S_SH}, 1")
    E(f"  s_cbranch_scc1 L_pro_shared2")
    def count(sctx, dst):
        E(f"  s_add_u32 s{sctx}, s{sctx}, 15")
        E(f"  s_lshr_b32 s{sctx}, s{sctx}, 4")
        E(f"  s_mov_b32 s{dst}, 0")
        for c in range(4):
            E(f"  s_add_u32 s{S_T0}, s{sctx}, {3-c}")
            E(f"  s_lshr_b32 s{S_T0}, s{S_T0}, 2")
            E(f"  s_lshl_b64 s[{S_MASK}:{S_MASK+1}], 1, s{S_T0}")
            E(f"  s_sub_u32 s{S_MASK}, s{S_MASK}, 1")
            E(f"  s_and_b32 s{S_MASK}, s{S_MASK}, s{S_TK+c}")
            E(f"  s_bcnt1_i32_b32 s{S_T0}, s{S_MASK}")
            E(f"  s_add_u32 s{dst}, s{dst}, s{S_T0}")
    count(S_N1, S_T2)
    count(S_N2, S_T3)
    E(f"  s_add_u32 s{S_T2}, s{S_T2}, 1")
    E(f"  s_lshr_b32 s{S_T2}, s{S_T2}, 1")
    E(f"  s_add_u32 s{S_T3}, s{S_T3}, 1")
    E(f"  s_lshr_b32 s{S_T3}, s{S_T3}, 1")
    E(f"  s_add_u32 s{S_MASK}, s{S_T2}, 1")
    E(f"  s_lshr_b32 s{S_MASK}, s{S_MASK}, 1")
    E(f"  s_lshr_b32 s{S_MASK+1}, s{S_T3}, 1")
    E(f"  s_sub_u32 s{S_MASK+2}, s{S_T2}, s{S_MASK}")
    E(f"  s_sub_u32 s{S_MASK+3}, s{S_T3}, s{S_MASK+1}")
    E(f"  s_cmp_eq_u32 s{S_HALF}, 0")
    E(f"  s_cselect_b32 s{S_MASK+4}, s{S_MASK}, s{S_MASK+2}")
    E(f"  s_cselect_b32 s{S_MASK+5}, s{S_MASK+1}, s{S_MASK+3}")
    E(f"  s_cselect_b32 s{S_MASK+6}, 0, s{S_MASK}")
    E(f"  s_cselect_b32 s{S_MASK+7}, 0, s{S_MASK+1}")
    E(f"  s_add_u32 s{S_T0}, s{S_MASK+4}, s{S_MASK+5}")
    E(f"  s_mul_i32 s{S_T1}, s{S_MASK+4}, 14")
    E(f"  s_mov_b32 s{S_W1}, 0")
    E(f"  s_mov_b32 s{S_T2}, s{S_T0}")
    for k in range(7):
        E(f"  s_cmp_le_u32 s{S_T2}, s{S_T1}")
        E(f"  s_addc_u32 s{S_W1}, s{S_W1}, 0")
        if k < 6:
            E(f"  s_add_u32 s{S_T2}, s{S_T2}, s{S_T0}")
            E(f"  s_add_u32 s{S_T2}, s{S_T2}, s{S_T0}")
    E(f"  s_cmp_lg_u32 s{S_MASK+4}, 0")
    E(f"  s_cselect_b32 s{S_T2}, 1, 0")
    E(f"  s_max_u32 s{S_W1}, s{S_W1}, s{S_T2}")
    E(f"  s_cmp_lg_u32 s{S_MASK+5}, 0")
    E(f"  s_cselect_b32 s{S_T2}, 6, 7")
    E(f"  s_min_u32 s{S_W1}, s{S_W1}, s{S_T2}")
    E(f"  s_sub_u32 s{S_T0}, s{S_W}, s{S_W1}")
    E(f"  s_sub_u32 s{S_T1}, {NPW}, s{S_W1}")
    E(f"  s_cmp_lt_u32 s{S_W}, s{S_W1}")
    E(f"  s_cselect_b32 s{S_B}, s{S_BL}, s{S_BS}")
    E(f"  s_cselect_b32 s{S_NB}, s{S_N1}, s{S_N2}")
    E(f"  s_cselect_b32 s{S_NSTEP}, s{S_MASK+4}, s{S_MASK+5}")
    E(f"  s_cselect_b32 s{S_ST}, s{S_MASK+6}, s{S_MASK+7}")
    E(f"  s_cselect_b32 s{S_IDX}, s{S_W}, s{S_T0}")
    E(f"  s_cselect_b32 s{S_STRIDE}, s{S_W1}, s{S_T1}")
    E(f"  s_cselect_b32 s{S_LIST}, 0, 1024")
    E(f"  s_cselect_b32 s{S_KVW}, 0, {1 if MIX else 0}")
    E(f"  s_cselect_b64 vcc, -1, 0")
    E(f"  s_xor_b32 s{S_KVW}, s{S_KVW}, s{S_KVH}")
    E(f"  s_lshl_b32 s{S_KVHOFF}, s{S_KVW}, 9")
    E(f"  v_mov_b32 v{VBL}, s{S_B}")
    E(f"  s_waitcnt vmcnt(0)")
    for c in range(4):
        E(f"  v_cndmask_b32 v{OWN+c}, v{OWN2+c}, v{OWN+c}, vcc")
    E(f"  s_mov_b32 s{S_T1}, 0")
    E(f"  s_branch L_pro_common2")
    E(f"L_pro_shared2:")
    for c in range(4):
        E(f"  v_mov_b32 v{OWN+c}, v{R0+c}")
    E(f"  s_mov_b32 s{S_LIST}, 2048")
    E(f"  s_mov_b32 s{S_T1}, -1")
    if MIX >= 2:
        E(f"  s_xor_b32 s{S_KVW}, s{S_KVH}, 1")
        E(f"  s_lshl_b32 s{S_KVHOFF}, s{S_KVW}, 9")
    else:
        E(f"  s_mov_b32 s{S_KVW}, s{S_KVH}")
    E(f"L_pro_common2:")
    E(f"  v_and_b32 v14, 1, v{VCOL}")
    E(f"  v_lshl_add_u32 v14, v{VBL}, 4, v14")
    E(f"  s_lshl_b32 s{S_T0}, s{S_KVW}, 1")
    E(f"  v_add_u32 v14, s{S_T0}, v14")
    E(f"  v_lshlrev_b32 v15, 9, v14")
    E(f"  v_lshl_add_u32 v15, v{VG}, 4, v15")
    for i in range(8):
        E(f"  global_load_dwordx4 {q4(V_Q+4*i)}, v15, s[16:17] offset:{i*64}")
    E(f"  v_lshlrev_b32 v14, 2, v{VBL}")
    E(f"  ds_bpermute_b32 v{V_REM}, v14, v{VCTX}")
    for c in range(4):
        E(f"  v_cmp_gt_u32 s[{S_MASK+8+2*c}:{S_MASK+8+2*c+1}], s{S_NB}, v{TB+1+c}")
    E(f"  s_nop 3")
    for c in range(4):
        E(f"  s_xor_b32 s{S_TK+c}, s{S_TK+c}, s{S_T1}")
        E(f"  s_and_b32 s{S_TK+c}, s{S_TK+c}, s{S_MASK+8+2*c}")
    E(f"  s_mov_b32 s{S_N}, 0")
    for c in range(4):
        E(f"  v_mbcnt_lo_u32_b32 v12, s{S_TK+c}, 0")
        E(f"  v_add_u32 v12, s{S_N}, v12")
        E(f"  v_lshlrev_b32 v12, 3, v12")
        E(f"  v_add_u32 v12, s{S_LIST}, v12")
        E(f"  v_mov_b32 v14, v{OWN+c}")
        E(f"  v_lshlrev_b32 v15, 4, v{TB+1+c}")
        E(f"  s_mov_b32 exec_lo, s{S_TK+c}")
        E(f"  s_mov_b32 exec_hi, 0")
        E(f"  ds_write_b64 v12, v[14:15]")
        E(f"  s_mov_b64 exec, -1")
        E(f"  s_bcnt1_i32_b32 s{S_T0}, s{S_TK+c}")
        E(f"  s_add_u32 s{S_N}, s{S_N}, s{S_T0}")
    E(f"  s_cmp_eq_u32 s{S_SH}, 0")
    E(f"  s_cbranch_scc1 L_pro_common3")
    E(f"  s_add_u32 s{S_T0}, s{S_N}, 1")
    E(f"  s_lshr_b32 s{S_T0}, s{S_T0}, 1")
    E(f"  s_lshr_b32 s{S_T1}, s{S_T0}, 3")
    E(f"  s_and_b32 s{S_T2}, s{S_T0}, 7")
    E(f"  s_mul_i32 s{S_ST}, s{S_PART}, s{S_T1}")
    E(f"  s_min_u32 s{S_BASE}, s{S_PART}, s{S_T2}")
    E(f"  s_add_u32 s{S_ST}, s{S_ST}, s{S_BASE}")
    E(f"  s_cmp_lt_u32 s{S_PART}, s{S_T2}")
    E(f"  s_cselect_b32 s{S_BASE}, 1, 0")
    E(f"  s_add_u32 s{S_NSTEP}, s{S_T1}, s{S_BASE}")
    E(f"  s_mov_b32 s{S_IDX}, 0")
    E(f"  s_mov_b32 s{S_STRIDE}, 1")
    E(f"L_pro_common3:")
    E(f"  s_lshl_b32 s{S_T3}, s{S_ST}, 1")
    E(f"  v_add_u32 v12, s{S_T3}, v{VL}")
    E(f"  v_lshlrev_b32 v13, 3, v12")
    E(f"  v_and_b32 v13, 0x3ff, v13")
    E(f"  v_add_u32 v13, s{S_LIST}, v13")
    E(f"  s_waitcnt lgkmcnt(0)")
    E(f"  ds_read_b64 v[14:15], v13")
    E(f"  v_cmp_gt_u32 vcc, s{S_N}, v12")
    E(f"  v_mov_b32 v13, 0x100000")
    E(f"  v_mov_b32 v12, 2112")
    E(f"  s_waitcnt lgkmcnt(0)")
    E(f"  v_cndmask_b32 v{V_PHYS}, v12, v14, vcc")
    E(f"  v_cndmask_b32 v{V_J16}, v13, v15, vcc")
    E(f"  v_lshlrev_b32 v12, 2, v{VG}")
    E(f"  v_sub_u32 v{V_REM}, v{V_REM}, v12")
    E(f"  s_cmp_ge_u32 s{S_IDX}, s{S_NSTEP}")
    E(f"  s_cbranch_scc1 L_zero_o")
    E(f"  s_cmp_eq_u32 s{S_SH}, 1")
    E(f"  s_cbranch_scc1 L_path_sh")
    for tag, nt in (("pr", " nt"), ("sh", "")):
        E(f"L_path_{tag}:")
        emit_next_offsets()
        emit_k_loads(nt)
        emit_v_loads(nt)
        E(f"  s_mov_b32 s{S_JA}, s{S_NJA}")
        E(f"  s_mov_b32 s{S_JB}, s{S_NJB}")
        for r in range(64):
            E(f"  v_mov_b32 v{V_O+r}, 0")
        emit_stamp()
        E(f"L_loop_{tag}:")
        emit_step(nt, tag)
        E(f"  s_cmp_lt_u32 s{S_IDX}, s{S_NSTEP}")
        E(f"  s_cbranch_scc1 L_loop_{tag}")
        E(f"  s_branch L_epilogue")
    E(f"L_zero_o:")
    for r in range(64):
        E(f"  v_mov_b32 v{V_O+r}, 0")
    E(f"L_epilogue:")
    E(f"  s_waitcnt vmcnt(0)")
    E(f"  s_nop 15")
    emit_xreduce(V_L, V_T, "v_add_f32")
    E(f"  v_and_b32 v{VL}, 63, v0")
    E(f"  v_and_b32 v{VCOL}, 15, v0")
    E(f"  v_lshrrev_b32 v{VG}, 4, v{VL}")
    E(f"  s_mov_b32 s{S_XSRD}, s30")
    E(f"  s_and_b32 s{S_XSRD+1}, s31, 0xffff")
    E(f"  s_mov_b32 s{S_XSRD+2}, {WS_BYTES}")
    E(f"  s_mov_b32 s{S_XSRD+3}, 0x00020000")
    lgs = NSLOT.bit_length() - 1
    E(f"  s_cmp_eq_u32 s{S_SH}, 1")
    E(f"  s_cbranch_scc1 L_epi_sh")
    SA = S_MASK
    SBI = S_MASK + 8
    for w in range(NPW):
        E(f"  s_cmp_lt_u32 {w}, s{S_W1}")
        E(f"  s_cselect_b32 s{SA+w}, 1.0, 0")
        E(f"  s_cselect_b32 s{SBI+w}, 0, 0xff800000")
    E(f"  v_lshlrev_b32 v12, 2, v0")
    E(f"  v_lshlrev_b32 v13, 2, v{VL}")
    E(f"  ds_write_b32 v12, v{V_M} offset:{LDS_M}")
    E(f"  s_waitcnt lgkmcnt(0)")
    E(f"  s_barrier")
    for w in range(NPW):
        E(f"  ds_read_b32 v{V_S+w}, v13 offset:{LDS_M + w*256}")
    E(f"  v_mov_b32 v14, 0xff800000")
    E(f"  v_mov_b32 v{V_P}, 0xff800000")
    E(f"  s_waitcnt lgkmcnt(0)")
    for w in range(NPW):
        E(f"  v_add_f32 v15, s{SBI+w}, v{V_S+w}")
        E(f"  v_max_f32 v14, v14, v15")
        E(f"  s_xor_b32 s{S_T0}, s{SBI+w}, 0xff800000")
        E(f"  v_add_f32 v15, s{S_T0}, v{V_S+w}")
        E(f"  v_max_f32 v{V_P}, v{V_P}, v15")
    E(f"  s_cmp_lt_u32 s{S_W}, s{S_W1}")
    E(f"  s_cselect_b64 vcc, -1, 0")
    E(f"  v_cndmask_b32 v15, v{V_P}, v14, vcc")
    E(f"  v_max_f32 v15, 0xff7fffff, v15")
    E(f"  v_mul_f32 v15, s{S_C}, v15")
    E(f"  v_fma_f32 v15, v{V_M}, s{S_C}, -v15")
    E(f"  v_exp_f32 v15, v15")
    E(f"  s_nop 0")
    E(f"  v_mul_f32 v{V_L}, v{V_L}, v15")
    for r in range(64):
        E(f"  v_mul_f32 v{V_O+r}, v{V_O+r}, v15")
    E(f"  ds_write_b32 v12, v{V_L} offset:{LDS_L}")
    E(f"  s_lshl_b32 s{S_T0}, s{S_W}, 11")
    E(f"  v_lshl_add_u32 v15, v{VG}, 1, v{VCOL}")
    E(f"  v_lshlrev_b32 v15, 4, v15")
    E(f"  v_add_u32 v15, s{S_T0}, v15")
    E(f"  v_cmp_gt_u32 vcc, 2, v{VCOL}")
    E(f"  s_nop 4")
    E(f"  s_mov_b64 exec, vcc")
    for qd in range(16):
        E(f"  ds_write_b128 v15, {q4(V_O+4*qd)} offset:{LDS_O + qd*128}")
    E(f"  s_mov_b64 exec, -1")
    E(f"  s_waitcnt lgkmcnt(0)")
    E(f"  s_barrier")
    E(f"  v_lshlrev_b32 v12, 2, v0")
    for w in range(NPW):
        E(f"  ds_read_b32 v{V_S+w}, v12 offset:{LDS_O + w*2048}")
    E(f"  s_cmp_lg_u32 s{S_W}, 0")
    E(f"  s_cbranch_scc1 L_epi_pr1")
    for w in range(NPW):
        E(f"  ds_read_b32 v{V_K+w}, v12 offset:{LDS_O + w*2048 + 448*4}")
    for w in range(NPW):
        E(f"  ds_read_b32 v{V_K+8+w}, v13 offset:{LDS_L + w*256}")
    E(f"L_epi_pr1:")
    def addr(tv, dst):
        E(f"  v_lshrrev_b32 v{V_V}, 5, v{tv}")
        E(f"  v_bfe_u32 v{V_V+1}, v{tv}, 2, 3")
        E(f"  v_and_b32 v{V_V+2}, 3, v{tv}")
        E(f"  v_lshrrev_b32 v{V_V+3}, 3, v{V_V}")
        E(f"  v_lshlrev_b32 v{V_V+3}, 7, v{V_V+3}")
        E(f"  v_and_b32 v{V_V}, 7, v{V_V}")
        E(f"  v_add_u32 v{V_V+3}, v{V_V+3}, v{V_V}")
        E(f"  v_lshl_add_u32 v{V_V+3}, v{V_V+2}, 3, v{V_V+3}")
        E(f"  v_lshrrev_b32 v{V_V}, 1, v{V_V+1}")
        E(f"  v_lshl_add_u32 v{V_V+3}, v{V_V}, 5, v{V_V+3}")
        E(f"  v_and_b32 v{V_V+1}, 1, v{V_V+1}")
        E(f"  v_lshlrev_b32 v{V_V+1}, {lgs+10}, v{V_V+1}")
        E(f"  v_lshl_add_u32 v{dst}, v{V_V+3}, 2, v{V_V+1}")
    for sb, dst in ((S_BL, S_T2), (S_BS, S_T3)):
        E(f"  s_lshl_b32 s{dst}, s{sb}, 4")
        if sb == S_BS and MIX:
            E(f"  s_xor_b32 s{S_T0}, s{S_KVH}, 1")
            E(f"  s_lshl_b32 s{S_T0}, s{S_T0}, 1")
        else:
            E(f"  s_lshl_b32 s{S_T0}, s{S_KVH}, 1")
        E(f"  s_add_u32 s{dst}, s{dst}, s{S_T0}")
        E(f"  s_lshl_b32 s{dst}, s{dst}, {lgs}")
        E(f"  s_add_u32 s{dst}, s{dst}, s{S_HALF}")
        E(f"  s_lshl_b32 s{dst}, s{dst}, 10")
    def twosum(base, da, db):
        E(f"  v_mul_f32 v{da}, s{SA}, v{base}")
        E(f"  v_mov_b32 v{db}, v{base}")
        for w in range(1, NPW):
            E(f"  v_fma_f32 v{da}, v{base+w}, s{SA+w}, v{da}")
            E(f"  v_add_f32 v{db}, v{db}, v{base+w}")
        E(f"  v_sub_f32 v{db}, v{db}, v{da}")
    addr(0, V_V+4)
    E(f"  s_waitcnt lgkmcnt(0)")
    def twosum_exact(base, da, db):
        E(f"  v_mov_b32 v{da}, 0")
        E(f"  v_mov_b32 v{db}, 0")
        for w in range(NPW):
            E(f"  v_fma_f32 v{da}, v{base+w}, s{SA+w}, v{da}")
            E(f"  s_xor_b32 s{S_T0}, s{SA+w}, 0x3f800000")
            E(f"  v_fma_f32 v{db}, v{base+w}, s{S_T0}, v{db}")
    twosum_exact(V_S, V_V+6, V_V+7)
    E(f"  buffer_store_dword v{V_V+6}, v{V_V+4}, s[{S_XSRD}:{S_XSRD+3}], s{S_T2} offen")
    E(f"  buffer_store_dword v{V_V+7}, v{V_V+4}, s[{S_XSRD}:{S_XSRD+3}], s{S_T3} offen")
    E(f"  s_cmp_lg_u32 s{S_W}, 0")
    E(f"  s_cbranch_scc1 L_epi_done")
    E(f"  v_add_u32 v12, 448, v{VL}")
    addr(12, V_V+5)
    twosum_exact(V_K, V_V+8, V_V+9)
    E(f"  buffer_store_dword v{V_V+8}, v{V_V+5}, s[{S_XSRD}:{S_XSRD+3}], s{S_T2} offen")
    E(f"  buffer_store_dword v{V_V+9}, v{V_V+5}, s[{S_XSRD}:{S_XSRD+3}], s{S_T3} offen")
    twosum_exact(V_K+8, 15, V_P+1)
    E(f"  v_lshlrev_b32 v12, {lgs+3}, v{VL}")
    E(f"  s_lshr_b32 s{S_T2}, s{S_T2}, 7")
    E(f"  s_lshr_b32 s{S_T3}, s{S_T3}, 7")
    E(f"  s_add_u32 s{S_T2}, s{S_T2}, {WS_ML_OFF}")
    E(f"  s_add_u32 s{S_T3}, s{S_T3}, {WS_ML_OFF}")
    E(f"  s_mov_b64 exec, 3")
    E(f"  buffer_store_dwordx2 v[14:15], v12, s[{S_XSRD}:{S_XSRD+3}], s{S_T2} offen")
    E(f"  buffer_store_dwordx2 v[{V_P}:{V_P+1}], v12, s[{S_XSRD}:{S_XSRD+3}], s{S_T3} offen")
    E(f"  s_branch L_epi_done")
    E(f"L_epi_sh:")
    E(f"  v_lshrrev_b32 v{VBL}, 1, v{VCOL}")
    E(f"  s_lshl_b32 s{S_T0}, s{S_BQ}, 3")
    E(f"  v_add_u32 v{VBL}, s{S_T0}, v{VBL}")
    E(f"  v_and_b32 v14, 1, v{VCOL}")
    E(f"  v_lshl_add_u32 v14, v{VBL}, 4, v14")
    E(f"  s_lshl_b32 s{S_T0}, s{S_KVW}, 1")
    E(f"  v_add_u32 v14, s{S_T0}, v14")
    E(f"  v_lshlrev_b32 v14, {lgs}, v14")
    E(f"  v_add_u32 v14, s{S_SLOT}, v14")
    E(f"  v_lshlrev_b32 v15, 10, v14")
    E(f"  v_lshl_add_u32 v15, v{VG}, 7, v15")
    E(f"  v_lshlrev_b32 v14, 3, v14")
    E(f"  v_add_u32 v14, {WS_ML_OFF}, v14")
    for hf in range(2):
        for r in range(4):
            base = V_K + (hf*4 + r) * 8
            for jj in range(8):
                E(f"  v_mov_b32 v{base+jj}, v{oreg(hf,jj)+r}")
    for hf in range(2):
        for r in range(4):
            base = V_K + (hf*4 + r) * 8
            for half in range(2):
                E(f"  buffer_store_dwordx4 {q4(base+4*half)}, v15, s[{S_XSRD}:{S_XSRD+3}], 0 offen offset:{hf*512 + r*32 + half*16}")
    E(f"  v_mov_b32 v12, v{V_M}")
    E(f"  v_mov_b32 v13, v{V_L}")
    E(f"  s_mov_b64 exec, 0xffff")
    E(f"  buffer_store_dwordx2 v[12:13], v14, s[{S_XSRD}:{S_XSRD+3}], 0 offen")
    E(f"  s_mov_b64 exec, -1")
    E(f"  s_barrier")
    E(f"  s_barrier")
    E(f"L_epi_done:")
    if STAMP:
        emit_stamp()
        E(f"  s_mov_b64 exec, -1")
        E(f"  s_lshl_b32 s99, s2, 3")
        E(f"  s_add_u32 s99, s99, s{S_W}")
        E(f"  s_lshl_b32 s99, s99, 8")
        E(f"  s_add_u32 s99, s99, 0xa00000")
        E(f"  v_and_b32 v253, 63, v0")
        E(f"  v_lshlrev_b32 v253, 2, v253")
        E(f"  v_add_u32 v253, s99, v253")
        E(f"  global_store_dword v253, v252, s[30:31]")
    E(f"L_main_end:")
    E(f"  s_endpgm")

def combine_kernel():
    MASKRAW = -998244352.0 * 16.0
    E(f".globl combine_kernel")
    E(f".p2align 8")
    E(f".type combine_kernel,@function")
    E(f"combine_kernel:")
    E(f"  s_cmp_ge_u32 s2, 128")
    E(f"  s_cbranch_scc1 L_cmb_end")
    E(f"  s_load_dwordx16 s[16:31], s[0:1], 0")
    E(f"  v_lshrrev_b32 v1, 6, v0")
    E(f"  v_and_b32 v2, 63, v0")
    E(f"  s_nop 0")
    E(f"  v_readfirstlane_b32 s3, v1")
    E(f"  s_lshl_b32 s4, s2, 2")
    E(f"  s_nop 2")
    E(f"  s_add_u32 s4, s4, s3")
    E(f"  s_mov_b32 s56, {f2u(C_SCALE):#x}")
    E(f"  s_waitcnt lgkmcnt(0)")
    E(f"  s_lshl_b32 s5, s4, {(NSLOT*8).bit_length()-1}")
    E(f"  s_add_u32 s5, s5, {WS_ML_OFF}")
    E(f"  s_load_dwordx16 s[32:47], s[30:31], s5")
    E(f"  s_add_u32 s5, s5, 64")
    E(f"  s_load_dwordx4 s[48:51], s[30:31], s5")
    E(f"  s_lshr_b32 s6, s4, 4")
    E(f"  s_lshl_b32 s7, s6, 2")
    E(f"  s_load_dword s52, s[24:25], s7")
    E(f"  s_mov_b32 s8, s30")
    E(f"  s_and_b32 s9, s31, 0xffff")
    E(f"  s_mov_b32 s10, {WS_BYTES}")
    E(f"  s_mov_b32 s11, 0x00020000")
    E(f"  s_lshl_b32 s12, s4, {10 + NSLOT.bit_length()-1}")
    E(f"  s_add_u32 s13, s12, 4096")
    E(f"  s_add_u32 s14, s12, 8192")
    E(f"  v_lshlrev_b32 v3, 4, v2")
    for s in range(NUSED):
        E(f"  buffer_load_dwordx4 v[{8+4*s}:{11+4*s}], v3, s[8:11], s{12 + (s>>2)} offen offset:{(s&3)*1024}")
    E(f"  s_waitcnt lgkmcnt(0)")
    E(f"  v_mov_b32 v4, s32")
    for s in range(1, NUSED):
        E(f"  v_max_f32 v4, s{32+2*s}, v4")
    E(f"  s_max_i32 s52, s52, 0")
    E(f"  s_min_i32 s52, s52, 2048")
    E(f"  s_sub_u32 s53, 2048, s52")
    E(f"  s_mov_b32 s54, 0")
    E(f"  s_cmp_eq_u32 s53, 0")
    E(f"  s_cbranch_scc1 L_cmb_fast")
    E(f"  v_cmp_gt_f32 vcc, {f2u(MASKRAW + 2048.0):#x}, v4")
    E(f"  s_nop 4")
    E(f"  s_cbranch_vccz L_cmb_fast")
    E(f"  s_mov_b32 s54, 1")
    E(f"  v_max_f32 v4, {f2u(MASKRAW):#x}, v4")
    E(f"L_cmb_fast:")
    E(f"  v_max_f32 v4, 0xff7fffff, v4")
    E(f"  v_mul_f32 v5, s56, v4")
    E(f"  v_mov_b32 v6, 0")
    A = 48
    assert 8 + 4*NUSED <= A
    for k in range(4):
        E(f"  v_mov_b32 v{A+k}, 0")
    E(f"  s_waitcnt vmcnt(0)")
    for s in range(NUSED):
        E(f"  v_mov_b32 v7, s{32+2*s}")
        E(f"  v_fma_f32 v7, v7, s56, -v5")
        E(f"  v_exp_f32 v7, v7")
        E(f"  s_nop 0")
        E(f"  v_fma_f32 v6, v7, s{33+2*s}, v6")
        for k in range(4):
            E(f"  v_fma_f32 v{A+k}, v7, v{8+4*s+k}, v{A+k}")
    E(f"  s_cmp_eq_u32 s54, 0")
    E(f"  s_cbranch_scc1 L_cmb_out")
    E(f"  v_mov_b32 v7, {f2u(MASKRAW):#x}")
    E(f"  v_fma_f32 v7, v7, s56, -v5")
    E(f"  v_exp_f32 v7, v7")
    E(f"  v_cvt_f32_u32 v52, s53")
    E(f"  v_fma_f32 v6, v7, v52, v6")
    E(f"  s_mov_b32 s8, s20")
    E(f"  s_and_b32 s9, s21, 0xffff")
    E(f"  s_mov_b32 s10, {KV_BYTES}")
    E(f"  s_mov_b32 s11, 0x00020000")
    E(f"  s_and_b32 s13, s4, 15")
    E(f"  s_lshr_b32 s13, s13, 1")
    E(f"  s_lshl_b32 s13, s13, 9")
    E(f"  v_lshlrev_b32 v3, 3, v2")
    for k in range(4):
        E(f"  v_mov_b32 v{54+k}, 0")
    E(f"L_cmb_slow:")
    E(f"  s_lshr_b32 s14, s52, 4")
    E(f"  s_lshl_b32 s14, s14, 2")
    E(f"  s_lshl_b32 s15, s6, 9")
    E(f"  s_add_u32 s14, s14, s15")
    E(f"  s_load_dword s15, s[22:23], s14")
    E(f"  s_waitcnt lgkmcnt(0)")
    E(f"  s_lshl_b32 s15, s15, 16")
    E(f"  s_and_b32 s14, s52, 15")
    E(f"  s_lshl_b32 s14, s14, 12")
    E(f"  s_add_u32 s15, s15, s14")
    E(f"  s_add_u32 s15, s15, s13")
    E(f"  buffer_load_dwordx2 v[58:59], v3, s[8:11], s15 offen")
    E(f"  s_waitcnt vmcnt(0)")
    E(f"  v_lshlrev_b32 v60, 16, v58")
    E(f"  v_and_b32 v61, 0xffff0000, v58")
    E(f"  v_lshlrev_b32 v62, 16, v59")
    E(f"  v_and_b32 v63, 0xffff0000, v59")
    for k in range(4):
        E(f"  v_add_f32 v{54+k}, v{54+k}, v{60+k}")
    E(f"  s_add_u32 s52, s52, 1")
    E(f"  s_cmp_lt_u32 s52, 2048")
    E(f"  s_cbranch_scc1 L_cmb_slow")
    for k in range(4):
        E(f"  v_fma_f32 v{A+k}, v7, v{54+k}, v{A+k}")
    E(f"L_cmb_out:")
    E(f"  v_rcp_f32 v6, v6")
    E(f"  s_nop 0")
    for k in range(4):
        E(f"  v_mul_f32 v{A+k}, v{A+k}, v6")
    E(f"  v_cvt_pk_bf16_f32 v52, v{A}, v{A+1}")
    E(f"  v_cvt_pk_bf16_f32 v53, v{A+2}, v{A+3}")
    E(f"  s_mov_b32 s8, s26")
    E(f"  s_and_b32 s9, s27, 0xffff")
    E(f"  s_mov_b32 s10, {512*512}")
    E(f"  s_mov_b32 s11, 0x00020000")
    E(f"  s_lshl_b32 s12, s4, 9")
    E(f"  v_lshlrev_b32 v3, 3, v2")
    E(f"  buffer_store_dwordx2 v[52:53], v3, s[8:11], s12 offen")
    E(f"L_cmb_end:")
    E(f"  s_endpgm")

def kd(name, vgpr, sgpr):
    E(f".amdhsa_kernel {name}")
    E(f"  .amdhsa_next_free_vgpr {vgpr}")
    E(f"  .amdhsa_next_free_sgpr {sgpr}")
    E(f"  .amdhsa_accum_offset {(vgpr+3)//4*4}")
    E(f"  .amdhsa_group_segment_fixed_size 0")
    E(f"  .amdhsa_kernarg_size 64")
    E(f"  .amdhsa_user_sgpr_count 2")
    E(f"  .amdhsa_user_sgpr_kernarg_segment_ptr 1")
    E(f"  .amdhsa_system_sgpr_workgroup_id_x 1")
    E(f"  .amdhsa_float_denorm_mode_32 3")
    E(f".end_amdhsa_kernel")

hdr = open("cdna_kernels/" + NAME + ".s.ref").read().split("; Override launch")[0]
E(hdr.rstrip())
E(f"; @launch kernel={NAME}_kernel grid=({NWG},1,1) block=({NW*64},1,1) lds={LDS_BYTES}")
E(f"; @launch kernel=combine_kernel grid=(128,1,1) block=(256,1,1) lds=0")
E('.amdgcn_target "amdgcn-amd-amdhsa--gfx950"')
E(".text")
main_kernel()
combine_kernel()
E('.section .rodata,"a"')
E(".p2align 6")
kd(f"{NAME}_kernel", V_END, S_END)
E(".p2align 6")
kd("combine_kernel", 64, 60)
open(sys.argv[1] if len(sys.argv) > 1 else "cdna_kernels/" + NAME + ".s", "w").write("\n".join(out) + "\n")
```

```python
import sys, os, struct
STAMP = int(os.environ.get('STAMP', '0'))
SHFIRST = int(os.environ.get('SHFIRST', '0'))
MIX = int(os.environ.get('MIX', '2'))
MOVREL = int(os.environ.get('MOVREL', '1'))
NATORD = int(os.environ.get('NATORD', '0'))
ROT = int(os.environ.get('ROT', '0'))
NAME = "standalone__paged_block_table_kv_radixattention__sampling"
NW = 8
NPW = 7
NWG = 256
SH_PARTS = 8
NSLOT = 16
NUSED = 10
WS_O_BYTES = 512 * NSLOT * 1024
WS_ML_OFF = WS_O_BYTES
WS_BYTES = WS_O_BYTES + 512 * NSLOT * 8
KV_BYTES = 2112 * 65536
C_SCALE = 0.0625 * 1.4426950408889634
LDS_LIST = 0
LDS_M = 3072
LDS_L = 5120
LDS_KEY = 7168
LDS_O = 7424
LDS_BYTES = LDS_O + NPW * 2048

def f2u(f):
    return struct.unpack("<I", struct.pack("<f", f))[0]
out = []
def E(s=""):
    out.append(s)

V_KOFF, V_VOFF, V_PHYS, V_J16, V_REM, V_M, V_L = 1, 2, 3, 4, 5, 6, 7
V_T = 8; V_S = 16; V_P = 24; V_Q = 28; V_O = 60; V_K = 124; V_V = 188
V_END = 256 if STAMP else 252
S_KSRD, S_VSRD, S_XSRD = 4, 8, 12
S_ARG = 16
S_W, S_KVH, S_SH, S_BQ, S_KVHOFF = 32, 33, 34, 35, 36
S_NSTEP, S_IDX, S_JA, S_JB = 37, 38, 39, 40
S_OFFA, S_OFFB = 41, 42
S_B = 43
S_VO = 44
S_C, S_SELLO, S_SELHI = 52, 53, 54
S_T0, S_T1, S_T2, S_T3 = 55, 56, 57, 58
S_LIST = 59
S_MASK = 60
S_CTX8 = 76
S_NJA, S_NJB, S_N = 84, 85, 86
S_TK = 88
S_BASE, S_PART, S_SLOT = 92, 93, 94
S_BL, S_BS, S_W1, S_HALF, S_P, S_N1, S_N2, S_ST = 76, 77, 78, 79, 80, 81, 82, 83
S_NB, S_STRIDE = 87, 95
S_KVW = 3
S_END = 102 if STAMP else 96

def kreg(tile, i): return V_K + tile * 32 + i * 4
def vreg(tile, e, hf): return V_V + ((tile * 4 + e) * 2 + hf) * 4
def oreg(hf, jj): return V_O + (hf * 8 + jj) * 4
def q4(r): return f"v[{r}:{r+3}]"

def emit_stamp():
    if not STAMP: return
    E(f"  s_memrealtime s[96:97]")
    E(f"  s_waitcnt lgkmcnt(0)")
    E(f"  s_mov_b32 m0, s98")
    E(f"  s_nop 0")
    E(f"  v_writelane_b32 v252, s96, m0")
    E(f"  s_add_u32 s98, s98, 1")
    E(f"  s_and_b32 s98, s98, 63")

def emit_next_offsets():
    E(f"  s_lshl_b32 s{S_T0}, s{S_IDX}, 1")
    E(f"  s_and_b32 s{S_T0}, s{S_T0}, 63")
    E(f"  s_add_u32 s{S_T1}, s{S_T0}, 1")
    E(f"  v_readlane_b32 s{S_OFFA}, v{V_PHYS}, s{S_T0}")
    E(f"  v_readlane_b32 s{S_OFFB}, v{V_PHYS}, s{S_T1}")
    E(f"  v_readlane_b32 s{S_NJA}, v{V_J16}, s{S_T0}")
    E(f"  v_readlane_b32 s{S_NJB}, v{V_J16}, s{S_T1}")
    E(f"  s_cmp_lt_u32 s{S_IDX}, s{S_NSTEP}")
    E(f"  s_nop 2")
    E(f"  s_cselect_b32 s{S_OFFA}, s{S_OFFA}, 2112")
    E(f"  s_cselect_b32 s{S_OFFB}, s{S_OFFB}, 2112")
    E(f"  s_lshl_b32 s{S_OFFA}, s{S_OFFA}, 16")
    E(f"  s_lshl_b32 s{S_OFFB}, s{S_OFFB}, 16")
    E(f"  s_add_u32 s{S_OFFA}, s{S_OFFA}, s{S_KVHOFF}")
    E(f"  s_add_u32 s{S_OFFB}, s{S_OFFB}, s{S_KVHOFF}")
    for t, so in ((0, S_OFFA), (1, S_OFFB)):
        for e in range(4):
            if e == 0: E(f"  s_mov_b32 s{S_VO + t*4}, s{so}")
            else: E(f"  s_add_u32 s{S_VO + t*4 + e}, s{so}, {e*4096}")

def emit_k_loads(nt):
    for t, so in ((0, S_OFFA), (1, S_OFFB)):
        for i in range(8):
            E(f"  buffer_load_dwordx4 {q4(kreg(t,i))}, v{V_KOFF}, s[{S_KSRD}:{S_KSRD+3}], s{so} offen offset:{i*64}{nt}")

def emit_v_loads(nt):
    for t in range(2):
        for e in range(4):
            for hf in range(2):
                E(f"  buffer_load_dwordx4 {q4(vreg(t,e,hf))}, v{V_VOFF}, s[{S_VSRD}:{S_VSRD+3}], s{S_VO+t*4+e} offen offset:{hf*256}{nt}")

def emit_xreduce(reg, tmp, op):
    E(f"  v_mov_b32 v{tmp}, v{reg}")
    E(f"  s_nop 1")
    E(f"  v_permlane32_swap_b32 v{reg}, v{tmp}")
    E(f"  s_nop 1")
    E(f"  {op} v{reg}, v{reg}, v{tmp}")
    E(f"  v_mov_b32 v{tmp}, v{reg}")
    E(f"  s_nop 1")
    E(f"  v_permlane16_swap_b32 v{reg}, v{tmp}")
    E(f"  s_nop 1")
    E(f"  {op} v{reg}, v{reg}, v{tmp}")

def emit_step(nt, tag):
    SA, SB = V_S, V_S + 4
    E(f"  s_waitcnt vmcnt(16)")
    emit_stamp()
    for i in range(8):
        for t, sr in ((0, SA), (1, SB)):
            c = "0" if i == 0 else q4(sr)
            E(f"  v_mfma_f32_16x16x32_bf16 {q4(sr)}, {q4(kreg(t,i))}, {q4(V_Q+4*i)}, {c}")
    E(f"  s_add_u32 s{S_IDX}, s{S_IDX}, s{S_STRIDE}")
    emit_next_offsets()
    emit_k_loads(nt)
    E(f"  v_subrev_u32 v{V_T}, s{S_JA}, v{V_REM}")
    E(f"  v_subrev_u32 v{V_T+1}, s{S_JB}, v{V_REM}")
    for r in range(4):
        E(f"  v_cmp_gt_i32 s[{S_MASK+2*r}:{S_MASK+2*r+1}], v{V_T}, {r}")
    for r in range(4):
        E(f"  v_cmp_gt_i32 s[{S_MASK+8+2*r}:{S_MASK+8+2*r+1}], v{V_T+1}, {r}")
    E(f"  v_mov_b32 v{V_T+2}, 0xff800000")
    E(f"  s_nop 1")
    for r in range(8):
        E(f"  v_cndmask_b32 v{V_S+r}, v{V_T+2}, v{V_S+r}, s[{S_MASK+2*r}:{S_MASK+2*r+1}]")
    E(f"  v_max3_f32 v{V_T}, v{V_S}, v{V_S+1}, v{V_S+2}")
    E(f"  v_max3_f32 v{V_T+1}, v{V_S+3}, v{V_S+4}, v{V_S+5}")
    E(f"  v_max3_f32 v{V_T}, v{V_S+6}, v{V_S+7}, v{V_T}")
    E(f"  v_max_f32 v{V_T}, v{V_T}, v{V_T+1}")
    emit_xreduce(V_T, V_T+1, "v_max_f32")
    E(f"  v_max_f32 v{V_T}, v{V_M}, v{V_T}")
    E(f"  v_max_f32 v{V_T+1}, 0xff7fffff, v{V_T}")
    E(f"  v_mul_f32 v{V_T+1}, s{S_C}, v{V_T+1}")
    E(f"  v_fma_f32 v{V_T+2}, v{V_M}, s{S_C}, -v{V_T+1}")
    E(f"  v_exp_f32 v{V_T+2}, v{V_T+2}")
    E(f"  v_mov_b32 v{V_M}, v{V_T}")
    for r in range(8):
        E(f"  v_fma_f32 v{V_S+r}, v{V_S+r}, s{S_C}, -v{V_T+1}")
    for r in range(8):
        E(f"  v_exp_f32 v{V_S+r}, v{V_S+r}")
    E(f"  v_cmp_neq_f32 vcc, 1.0, v{V_T+2}")
    E(f"  v_mul_f32 v{V_L}, v{V_L}, v{V_T+2}")
    E(f"  v_add_f32 v{V_T+3}, v{V_S}, v{V_S+1}")
    E(f"  v_add_f32 v{V_T+4}, v{V_S+2}, v{V_S+3}")
    E(f"  v_add_f32 v{V_T+5}, v{V_S+4}, v{V_S+5}")
    E(f"  v_add_f32 v{V_T+6}, v{V_S+6}, v{V_S+7}")
    E(f"  v_add_f32 v{V_T+3}, v{V_T+3}, v{V_T+4}")
    E(f"  v_add_f32 v{V_T+5}, v{V_T+5}, v{V_T+6}")
    E(f"  v_add_f32 v{V_T+3}, v{V_T+3}, v{V_T+5}")
    E(f"  v_add_f32 v{V_L}, v{V_L}, v{V_T+3}")
    for k in range(4):
        E(f"  v_cvt_pk_bf16_f32 v{V_P+k}, v{V_S+2*k}, v{V_S+2*k+1}")
    E(f"  s_cbranch_vccz L_noscale_{tag}")
    for r in range(64):
        E(f"  v_mul_f32 v{V_O+r}, v{V_O+r}, v{V_T+2}")
    E(f"L_noscale_{tag}:")
    E(f"  s_waitcnt vmcnt(16)")
    emit_stamp()
    n = 0
    for hf in range(2):
        for jj in range(8):
            tq = V_T + (n & 1) * 4
            sel = S_SELHI if (jj & 1) else S_SELLO
            w = jj >> 1
            for t in range(2):
                for pp in range(2):
                    lo = vreg(t, 2*pp, hf) + w
                    hi = vreg(t, 2*pp+1, hf) + w
                    E(f"  v_perm_b32 v{tq + t*2 + pp}, v{hi}, v{lo}, s{sel}")
            E(f"  s_nop 1")
            E(f"  v_mfma_f32_16x16x32_bf16 {q4(oreg(hf,jj))}, {q4(tq)}, {q4(V_P)}, {q4(oreg(hf,jj))}")
            n += 1
    emit_v_loads(nt)
    E(f"  s_mov_b32 s{S_JA}, s{S_NJA}")
    E(f"  s_mov_b32 s{S_JB}, s{S_NJB}")

def main_kernel():
    E(f".globl {NAME}_kernel")
    E(f".p2align 8")
    E(f".type {NAME}_kernel,@function")
    E(f"{NAME}_kernel:")
    E(f"  s_cmp_ge_u32 s2, {NWG}")
    E(f"  s_cbranch_scc1 L_main_end")
    if STAMP:
        E(f"  s_mov_b32 s98, 0")
        E(f"  v_mov_b32 v252, 0")
    emit_stamp()
    E(f"  s_load_dwordx16 s[{S_ARG}:{S_ARG+15}], s[0:1], 0")
    VL, VCOL, VG, VBL = 8, 9, 10, 11
    VCTX, VKEY, VRANK = 16, 17, 18
    KB = V_Q
    TB = V_K; R0 = V_K + 64; OWN = V_K + 68; OWN2 = V_K + 72
    if SHFIRST:
        E(f"  v_add_u32 v0, 448, v0")
        E(f"  v_and_b32 v0, 511, v0")
    E(f"  v_and_b32 v{VL}, 63, v0")
    E(f"  v_lshrrev_b32 v12, 6, v0")
    E(f"  v_and_b32 v{VCOL}, 15, v0")
    E(f"  v_readfirstlane_b32 s{S_W}, v12")
    E(f"  v_lshrrev_b32 v{VG}, 4, v{VL}")
    E(f"  s_lshr_b32 s{S_B}, s2, 3")
    if ROT:
        E(f"  s_add_u32 s{S_KVH}, s2, s{S_B}")
        E(f"  s_and_b32 s{S_KVH}, s{S_KVH}, 7")
    else:
        E(f"  s_and_b32 s{S_KVH}, s2, 7")
    E(f"  s_lshl_b32 s{S_KVHOFF}, s{S_KVH}, 9")
    E(f"  s_mov_b32 s{S_C}, {f2u(C_SCALE):#x}")
    E(f"  s_mov_b32 s{S_SELLO}, 0x05040100")
    E(f"  s_mov_b32 s{S_SELHI}, 0x07060302")
    E(f"  v_and_b32 v12, 31, v{VL}")
    E(f"  v_lshlrev_b32 v14, 2, v12")
    E(f"  v_lshlrev_b32 v12, 4, v12")
    E(f"  v_lshrrev_b32 v13, 5, v{VL}")
    E(f"  v_lshl_add_u32 v13, v13, 9, v12")
    E(f"  s_mov_b32 s{S_T2}, 4096")
    E(f"  s_mov_b32 s{S_T3}, 8192")
    E(f"  s_mov_b32 s{S_BASE}, 12288")
    E(f"  s_cmp_eq_u32 s{S_W}, {NPW}")
    E(f"  s_cselect_b32 s{S_SH}, 1, 0")
    E(f"  s_waitcnt lgkmcnt(0)")
    E(f"  global_load_dword v{VCTX}, v14, s[24:25]")
    for srd, lo, nb in ((S_XSRD, 22, 16384), (S_KSRD, 18, KV_BYTES), (S_VSRD, 20, KV_BYTES)):
        E(f"  s_mov_b32 s{srd}, s{lo}")
        E(f"  s_and_b32 s{srd+1}, s{lo+1}, 0xffff")
        E(f"  s_mov_b32 s{srd+2}, {nb}")
        E(f"  s_mov_b32 s{srd+3}, 0x00020000")
    so = ["0", f"s{S_T2}", f"s{S_T3}", f"s{S_BASE}"]
    E(f"  buffer_load_dwordx4 {q4(R0)}, v12, s[{S_XSRD}:{S_XSRD+3}], 0 offen")
    for i in range(16):
        E(f"  buffer_load_dwordx4 {q4(TB+4*i)}, v13, s[{S_XSRD}:{S_XSRD+3}], {so[i>>2]} offen offset:{(i&3)*1024}")
    E(f"  v_lshlrev_b32 v{V_KOFF}, 12, v{VCOL}")
    E(f"  v_lshl_add_u32 v{V_KOFF}, v{VG}, 4, v{V_KOFF}")
    E(f"  v_lshlrev_b32 v{V_VOFF}, 14, v{VG}")
    E(f"  v_lshl_add_u32 v{V_VOFF}, v{VCOL}, 4, v{V_VOFF}")
    E(f"  v_mov_b32 v{V_M}, 0xff800000")
    E(f"  v_mov_b32 v{V_L}, 0")
    E(f"  s_waitcnt vmcnt(17)")
    E(f"  v_max_i32 v{VCTX}, 0, v{VCTX}")
    E(f"  v_min_i32 v{VCTX}, 2048, v{VCTX}")
    E(f"  s_cmp_eq_u32 s{S_SH}, 1")
    E(f"  s_cbranch_scc1 L_pro_shared")
    E(f"  s_lshr_b32 s{S_P}, s{S_B}, 1")
    E(f"  s_and_b32 s{S_HALF}, s{S_B}, 1")
    E(f"  v_and_b32 v15, 31, v{VL}")
    E(f"  v_sub_u32 v15, 31, v15")
    E(f"  v_lshl_add_u32 v{VKEY}, v{VCTX}, 5, v15")
    E(f"  ds_write_b32 v14, v{VKEY} offset:{LDS_KEY}")
    E(f"  v_lshrrev_b32 v15, 5, v{VL}")
    E(f"  v_lshlrev_b32 v15, 6, v15")
    E(f"  v_mov_b32 v{VRANK}, 0")
    E(f"  s_waitcnt lgkmcnt(0)")
    for k in range(4):
        E(f"  ds_read_b128 {q4(KB+4*k)}, v15 offset:{LDS_KEY + 16*k}")
    E(f"  s_waitcnt lgkmcnt(0)")
    for bt in range(2):
        for k in range(8):
            E(f"  v_cmp_gt_u32 s[{S_MASK+2*k}:{S_MASK+2*k+1}], v{KB+bt*8+k}, v{VKEY}")
        E(f"  s_nop 1")
        for k in range(8):
            E(f"  v_addc_co_u32 v{VRANK}, vcc, 0, v{VRANK}, s[{S_MASK+2*k}:{S_MASK+2*k+1}]")
    E(f"  v_mov_b32 v15, v{VRANK}")
    E(f"  s_nop 1")
    E(f"  v_permlane32_swap_b32 v{VRANK}, v15")
    E(f"  s_nop 1")
    E(f"  v_add_u32 v{VRANK}, v{VRANK}, v15")
    E(f"  s_sub_u32 s{S_T0}, 31, s{S_P}")
    E(f"  v_cmp_eq_u32 s[{S_MASK}:{S_MASK+1}], s{S_P}, v{VRANK}")
    E(f"  v_cmp_eq_u32 s[{S_MASK+2}:{S_MASK+3}], s{S_T0}, v{VRANK}")
    E(f"  s_nop 3")
    E(f"  s_ff1_i32_b32 s{S_BL}, s{S_MASK}")
    E(f"  s_ff1_i32_b32 s{S_BS}, s{S_MASK+2}")
    if not MOVREL:
        E(f"  s_lshl_b32 s{S_T0}, s{S_BL}, 9")
        E(f"  s_lshl_b32 s{S_T1}, s{S_BS}, 9")
        E(f"  buffer_load_dwordx4 {q4(OWN)}, v12, s[{S_XSRD}:{S_XSRD+3}], s{S_T0} offen")
        E(f"  buffer_load_dwordx4 {q4(OWN2)}, v12, s[{S_XSRD}:{S_XSRD+3}], s{S_T1} offen")
    E(f"  v_readlane_b32 s{S_N1}, v{VCTX}, s{S_BL}")
    E(f"  v_readlane_b32 s{S_N2}, v{VCTX}, s{S_BS}")
    if not MOVREL:
        E(f"  s_waitcnt vmcnt(2)")
    else:
        E(f"  s_waitcnt vmcnt(0)")
        for sb, dst in ((S_BL, OWN), (S_BS, OWN2)):
            E(f"  s_lshr_b32 s{S_T0}, s{sb}, 1")
            E(f"  s_lshl_b32 s{S_T1}, s{S_T0}, 2")
            E(f"  s_and_b32 s{S_T0}, s{sb}, 1")
            E(f"  s_cmp_eq_u32 s{S_T0}, 0")
            E(f"  s_cselect_b64 vcc, -1, 0")
            E(f"  s_set_gpr_idx_on s{S_T1}, gpr_idx(SRC0)")
            for c in range(4):
                E(f"  v_mov_b32 v{dst+c}, v{TB+c}")
            E(f"  s_set_gpr_idx_off")
            for c in range(4):
                E(f"  v_mov_b32 v{24+c}, v{dst+c}")
            E(f"  s_nop 1")
            for c in range(4):
                E(f"  v_permlane32_swap_b32 v{dst+c}, v{24+c}")
            E(f"  s_nop 1")
            for c in range(4):
                E(f"  v_cndmask_b32 v{dst+c}, v{24+c}, v{dst+c}, vcc")
    E(f"  s_branch L_pro_common")
    E(f"L_pro_shared:")
    E(f"  s_lshr_b32 s{S_PART}, s{S_B}, 2")
    E(f"  s_and_b32 s{S_BQ}, s{S_B}, 3")
    E(f"  s_add_u32 s{S_SLOT}, s{S_PART}, 2")
    E(f"  s_lshl_b32 s{S_T0}, s{S_BQ}, 3")
    E(f"  s_mov_b32 s{S_NB}, 0")
    for k in range(8):
        E(f"  s_add_u32 s{S_T1}, s{S_T0}, {k}")
        E(f"  v_readlane_b32 s{S_T2}, v{VCTX}, s{S_T1}")
        E(f"  s_nop 3")
        E(f"  s_max_u32 s{S_NB}, s{S_NB}, s{S_T2}")
    E(f"  s_add_u32 s{S_NB}, s{S_NB}, 15")
    E(f"  s_lshr_b32 s{S_NB}, s{S_NB}, 4")
    E(f"  v_lshrrev_b32 v{VBL}, 1, v{VCOL}")
    E(f"  v_add_u32 v{VBL}, s{S_T0}, v{VBL}")
    E(f"  s_waitcnt vmcnt(0)")
    E(f"L_pro_common:")
    for c in range(4):
        E(f"  v_xor_b32 v{20+c}, v{TB+c}, v{R0+c}")
        for i in range(1, 16):
            E(f"  v_xor_b32 v{TB+4*i+c}, v{TB+4*i+c}, v{R0+c}")
        for i in range(1, 16, 2):
            if i + 1 < 16: E(f"  v_or3_b32 v{20+c}, v{20+c}, v{TB+4*i+c}, v{TB+4*(i+1)+c}")
            else: E(f"  v_or_b32 v{20+c}, v{20+c}, v{TB+4*i+c}")
    for c in range(4):
        E(f"  v_cmp_ne_u32 s[{S_MASK+2*c}:{S_MASK+2*c+1}], 0, v{20+c}")
    E(f"  v_and_b32 v{TB}, 31, v{VL}")
    E(f"  v_lshlrev_b32 v{TB}, 2, v{TB}")
    for c in range(4):
        E(f"  v_add_u32 v{TB+1+c}, {c}, v{TB}")
    for c in range(4):
        E(f"  s_or_b32 s{S_TK+c}, s{S_MASK+2*c}, s{S_MASK+2*c+1}")
    E(f"  s_cmp_eq_u32 s{S_SH}, 1")
    E(f"  s_cbranch_scc1 L_pro_shared2")
    def count(sctx, dst):
        E(f"  s_add_u32 s{sctx}, s{sctx}, 15")
        E(f"  s_lshr_b32 s{sctx}, s{sctx}, 4")
        E(f"  s_mov_b32 s{dst}, 0")
        for c in range(4):
            E(f"  s_add_u32 s{S_T0}, s{sctx}, {3-c}")
            E(f"  s_lshr_b32 s{S_T0}, s{S_T0}, 2")
            E(f"  s_lshl_b64 s[{S_MASK}:{S_MASK+1}], 1, s{S_T0}")
            E(f"  s_sub_u32 s{S_MASK}, s{S_MASK}, 1")
            E(f"  s_and_b32 s{S_MASK}, s{S_MASK}, s{S_TK+c}")
            E(f"  s_bcnt1_i32_b32 s{S_T0}, s{S_MASK}")
            E(f"  s_add_u32 s{dst}, s{dst}, s{S_T0}")
    count(S_N1, S_T2)
    count(S_N2, S_T3)
    E(f"  s_add_u32 s{S_T2}, s{S_T2}, 1")
    E(f"  s_lshr_b32 s{S_T2}, s{S_T2}, 1")
    E(f"  s_add_u32 s{S_T3}, s{S_T3}, 1")
    E(f"  s_lshr_b32 s{S_T3}, s{S_T3}, 1")
    E(f"  s_add_u32 s{S_MASK}, s{S_T2}, 1")
    E(f"  s_lshr_b32 s{S_MASK}, s{S_MASK}, 1")
    E(f"  s_lshr_b32 s{S_MASK+1}, s{S_T3}, 1")
    E(f"  s_sub_u32 s{S_MASK+2}, s{S_T2}, s{S_MASK}")
    E(f"  s_sub_u32 s{S_MASK+3}, s{S_T3}, s{S_MASK+1}")
    E(f"  s_cmp_eq_u32 s{S_HALF}, 0")
    E(f"  s_cselect_b32 s{S_MASK+4}, s{S_MASK}, s{S_MASK+2}")
    E(f"  s_cselect_b32 s{S_MASK+5}, s{S_MASK+1}, s{S_MASK+3}")
    E(f"  s_cselect_b32 s{S_MASK+6}, 0, s{S_MASK}")
    E(f"  s_cselect_b32 s{S_MASK+7}, 0, s{S_MASK+1}")
    E(f"  s_add_u32 s{S_T0}, s{S_MASK+4}, s{S_MASK+5}")
    E(f"  s_mul_i32 s{S_T1}, s{S_MASK+4}, 14")
    E(f"  s_mov_b32 s{S_W1}, 0")
    E(f"  s_mov_b32 s{S_T2}, s{S_T0}")
    for k in range(7):
        E(f"  s_cmp_le_u32 s{S_T2}, s{S_T1}")
        E(f"  s_addc_u32 s{S_W1}, s{S_W1}, 0")
        if k < 6:
            E(f"  s_add_u32 s{S_T2}, s{S_T2}, s{S_T0}")
            E(f"  s_add_u32 s{S_T2}, s{S_T2}, s{S_T0}")
    E(f"  s_cmp_lg_u32 s{S_MASK+4}, 0")
    E(f"  s_cselect_b32 s{S_T2}, 1, 0")
    E(f"  s_max_u32 s{S_W1}, s{S_W1}, s{S_T2}")
    E(f"  s_cmp_lg_u32 s{S_MASK+5}, 0")
    E(f"  s_cselect_b32 s{S_T2}, 6, 7")
    E(f"  s_min_u32 s{S_W1}, s{S_W1}, s{S_T2}")
    E(f"  s_sub_u32 s{S_T0}, s{S_W}, s{S_W1}")
    E(f"  s_sub_u32 s{S_T1}, {NPW}, s{S_W1}")
    E(f"  s_cmp_lt_u32 s{S_W}, s{S_W1}")
    E(f"  s_cselect_b32 s{S_B}, s{S_BL}, s{S_BS}")
    E(f"  s_cselect_b32 s{S_NB}, s{S_N1}, s{S_N2}")
    E(f"  s_cselect_b32 s{S_NSTEP}, s{S_MASK+4}, s{S_MASK+5}")
    E(f"  s_cselect_b32 s{S_ST}, s{S_MASK+6}, s{S_MASK+7}")
    E(f"  s_cselect_b32 s{S_IDX}, s{S_W}, s{S_T0}")
    E(f"  s_cselect_b32 s{S_STRIDE}, s{S_W1}, s{S_T1}")
    E(f"  s_cselect_b32 s{S_LIST}, 0, 1024")
    E(f"  s_cselect_b32 s{S_KVW}, 0, {1 if MIX else 0}")
    E(f"  s_cselect_b64 vcc, -1, 0")
    E(f"  s_xor_b32 s{S_KVW}, s{S_KVW}, s{S_KVH}")
    E(f"  s_lshl_b32 s{S_KVHOFF}, s{S_KVW}, 9")
    E(f"  v_mov_b32 v{VBL}, s{S_B}")
    E(f"  s_waitcnt vmcnt(0)")
    for c in range(4):
        E(f"  v_cndmask_b32 v{OWN+c}, v{OWN2+c}, v{OWN+c}, vcc")
    E(f"  s_mov_b32 s{S_T1}, 0")
    E(f"  s_branch L_pro_common2")
    E(f"L_pro_shared2:")
    for c in range(4):
        E(f"  v_mov_b32 v{OWN+c}, v{R0+c}")
    E(f"  s_mov_b32 s{S_LIST}, 2048")
    E(f"  s_mov_b32 s{S_T1}, -1")
    if MIX >= 2:
        E(f"  s_xor_b32 s{S_KVW}, s{S_KVH}, 1")
        E(f"  s_lshl_b32 s{S_KVHOFF}, s{S_KVW}, 9")
    else:
        E(f"  s_mov_b32 s{S_KVW}, s{S_KVH}")
    E(f"L_pro_common2:")
    E(f"  v_and_b32 v14, 1, v{VCOL}")
    E(f"  v_lshl_add_u32 v14, v{VBL}, 4, v14")
    E(f"  s_lshl_b32 s{S_T0}, s{S_KVW}, 1")
    E(f"  v_add_u32 v14, s{S_T0}, v14")
    E(f"  v_lshlrev_b32 v15, 9, v14")
    E(f"  v_lshl_add_u32 v15, v{VG}, 4, v15")
    for i in range(8):
        E(f"  global_load_dwordx4 {q4(V_Q+4*i)}, v15, s[16:17] offset:{i*64}")
    E(f"  v_lshlrev_b32 v14, 2, v{VBL}")
    E(f"  ds_bpermute_b32 v{V_REM}, v14, v{VCTX}")
    for c in range(4):
        E(f"  v_cmp_gt_u32 s[{S_MASK+8+2*c}:{S_MASK+8+2*c+1}], s{S_NB}, v{TB+1+c}")
    E(f"  s_nop 3")
    for c in range(4):
        E(f"  s_xor_b32 s{S_TK+c}, s{S_TK+c}, s{S_T1}")
        E(f"  s_and_b32 s{S_TK+c}, s{S_TK+c}, s{S_MASK+8+2*c}")
    E(f"  s_mov_b32 s{S_N}, 0")
    if NATORD:
        E(f"  v_mbcnt_lo_u32_b32 v13, s{S_TK}, 0")
        for c in range(1, 4):
            E(f"  v_mbcnt_lo_u32_b32 v13, s{S_TK+c}, v13")
    for c in range(4):
        if NATORD:
            if c > 0:
                E(f"  v_and_b32 v12, 31, v{VL}")
                E(f"  v_lshrrev_b32 v12, v12, s{S_TK+c-1}")
                E(f"  v_and_b32 v12, 1, v12")
                E(f"  v_add_u32 v13, v13, v12")
            E(f"  v_lshlrev_b32 v12, 3, v13")
        else:
            E(f"  v_mbcnt_lo_u32_b32 v12, s{S_TK+c}, 0")
            E(f"  v_add_u32 v12, s{S_N}, v12")
            E(f"  v_lshlrev_b32 v12, 3, v12")
        E(f"  v_add_u32 v12, s{S_LIST}, v12")
        E(f"  v_mov_b32 v14, v{OWN+c}")
        E(f"  v_lshlrev_b32 v15, 4, v{TB+1+c}")
        E(f"  s_mov_b32 exec_lo, s{S_TK+c}")
        E(f"  s_mov_b32 exec_hi, 0")
        E(f"  ds_write_b64 v12, v[14:15]")
        E(f"  s_mov_b64 exec, -1")
        E(f"  s_bcnt1_i32_b32 s{S_T0}, s{S_TK+c}")
        E(f"  s_add_u32 s{S_N}, s{S_N}, s{S_T0}")
    E(f"  s_cmp_eq_u32 s{S_SH}, 0")
    E(f"  s_cbranch_scc1 L_pro_common3")
    E(f"  s_add_u32 s{S_T0}, s{S_N}, 1")
    E(f"  s_lshr_b32 s{S_T0}, s{S_T0}, 1")
    E(f"  s_lshr_b32 s{S_T1}, s{S_T0}, 3")
    E(f"  s_and_b32 s{S_T2}, s{S_T0}, 7")
    E(f"  s_mul_i32 s{S_ST}, s{S_PART}, s{S_T1}")
    E(f"  s_min_u32 s{S_BASE}, s{S_PART}, s{S_T2}")
    E(f"  s_add_u32 s{S_ST}, s{S_ST}, s{S_BASE}")
    E(f"  s_cmp_lt_u32 s{S_PART}, s{S_T2}")
    E(f"  s_cselect_b32 s{S_BASE}, 1, 0")
    E(f"  s_add_u32 s{S_NSTEP}, s{S_T1}, s{S_BASE}")
    E(f"  s_mov_b32 s{S_IDX}, 0")
    E(f"  s_mov_b32 s{S_STRIDE}, 1")
    E(f"L_pro_common3:")
    E(f"  s_lshl_b32 s{S_T3}, s{S_ST}, 1")
    E(f"  v_add_u32 v12, s{S_T3}, v{VL}")
    E(f"  v_lshlrev_b32 v13, 3, v12")
    E(f"  v_and_b32 v13, 0x3ff, v13")
    E(f"  v_add_u32 v13, s{S_LIST}, v13")
    E(f"  s_waitcnt lgkmcnt(0)")
    E(f"  ds_read_b64 v[14:15], v13")
    E(f"  v_cmp_gt_u32 vcc, s{S_N}, v12")
    E(f"  v_mov_b32 v13, 0x100000")
    E(f"  v_mov_b32 v12, 2112")
    E(f"  s_waitcnt lgkmcnt(0)")
    E(f"  v_cndmask_b32 v{V_PHYS}, v12, v14, vcc")
    E(f"  v_cndmask_b32 v{V_J16}, v13, v15, vcc")
    E(f"  v_lshlrev_b32 v12, 2, v{VG}")
    E(f"  v_sub_u32 v{V_REM}, v{V_REM}, v12")
    E(f"  s_cmp_ge_u32 s{S_IDX}, s{S_NSTEP}")
    E(f"  s_cbranch_scc1 L_zero_o")
    E(f"  s_cmp_eq_u32 s{S_SH}, 1")
    E(f"  s_cbranch_scc1 L_path_sh")
    for tag, nt in (("pr", " nt"), ("sh", "")):
        E(f"L_path_{tag}:")
        emit_next_offsets()
        emit_k_loads(nt)
        emit_v_loads(nt)
        E(f"  s_mov_b32 s{S_JA}, s{S_NJA}")
        E(f"  s_mov_b32 s{S_JB}, s{S_NJB}")
        for r in range(64):
            E(f"  v_mov_b32 v{V_O+r}, 0")
        emit_stamp()
        E(f"L_loop_{tag}:")
        emit_step(nt, tag)
        E(f"  s_cmp_lt_u32 s{S_IDX}, s{S_NSTEP}")
        E(f"  s_cbranch_scc1 L_loop_{tag}")
        E(f"  s_branch L_epilogue")
    E(f"L_zero_o:")
    for r in range(64):
        E(f"  v_mov_b32 v{V_O+r}, 0")
    E(f"L_epilogue:")
    E(f"  s_waitcnt vmcnt(0)")
    E(f"  s_nop 15")
    emit_xreduce(V_L, V_T, "v_add_f32")
    E(f"  v_and_b32 v{VL}, 63, v0")
    E(f"  v_and_b32 v{VCOL}, 15, v0")
    E(f"  v_lshrrev_b32 v{VG}, 4, v{VL}")
    E(f"  s_mov_b32 s{S_XSRD}, s30")
    E(f"  s_and_b32 s{S_XSRD+1}, s31, 0xffff")
    E(f"  s_mov_b32 s{S_XSRD+2}, {WS_BYTES}")
    E(f"  s_mov_b32 s{S_XSRD+3}, 0x00020000")
    lgs = NSLOT.bit_length() - 1
    E(f"  s_cmp_eq_u32 s{S_SH}, 1")
    E(f"  s_cbranch_scc1 L_epi_sh")
    SA = S_MASK
    SBI = S_MASK + 8
    for w in range(NPW):
        E(f"  s_cmp_lt_u32 {w}, s{S_W1}")
        E(f"  s_cselect_b32 s{SA+w}, 1.0, 0")
        E(f"  s_cselect_b32 s{SBI+w}, 0, 0xff800000")
    E(f"  v_lshlrev_b32 v12, 2, v0")
    E(f"  v_lshlrev_b32 v13, 2, v{VL}")
    E(f"  ds_write_b32 v12, v{V_M} offset:{LDS_M}")
    E(f"  s_waitcnt lgkmcnt(0)")
    E(f"  s_barrier")
    for w in range(NPW):
        E(f"  ds_read_b32 v{V_S+w}, v13 offset:{LDS_M + w*256}")
    E(f"  v_mov_b32 v14, 0xff800000")
    E(f"  v_mov_b32 v{V_P}, 0xff800000")
    E(f"  s_waitcnt lgkmcnt(0)")
    for w in range(NPW):
        E(f"  v_add_f32 v15, s{SBI+w}, v{V_S+w}")
        E(f"  v_max_f32 v14, v14, v15")
        E(f"  s_xor_b32 s{S_T0}, s{SBI+w}, 0xff800000")
        E(f"  v_add_f32 v15, s{S_T0}, v{V_S+w}")
        E(f"  v_max_f32 v{V_P}, v{V_P}, v15")
    E(f"  s_cmp_lt_u32 s{S_W}, s{S_W1}")
    E(f"  s_cselect_b64 vcc, -1, 0")
    E(f"  v_cndmask_b32 v15, v{V_P}, v14, vcc")
    E(f"  v_max_f32 v15, 0xff7fffff, v15")
    E(f"  v_mul_f32 v15, s{S_C}, v15")
    E(f"  v_fma_f32 v15, v{V_M}, s{S_C}, -v15")
    E(f"  v_exp_f32 v15, v15")
    E(f"  s_nop 0")
    E(f"  v_mul_f32 v{V_L}, v{V_L}, v15")
    for r in range(64):
        E(f"  v_mul_f32 v{V_O+r}, v{V_O+r}, v15")
    E(f"  ds_write_b32 v12, v{V_L} offset:{LDS_L}")
    E(f"  s_lshl_b32 s{S_T0}, s{S_W}, 11")
    E(f"  v_lshl_add_u32 v15, v{VG}, 1, v{VCOL}")
    E(f"  v_lshlrev_b32 v15, 4, v15")
    E(f"  v_add_u32 v15, s{S_T0}, v15")
    E(f"  v_cmp_gt_u32 vcc, 2, v{VCOL}")
    E(f"  s_nop 4")
    E(f"  s_mov_b64 exec, vcc")
    for qd in range(16):
        E(f"  ds_write_b128 v15, {q4(V_O+4*qd)} offset:{LDS_O + qd*128}")
    E(f"  s_mov_b64 exec, -1")
    E(f"  s_waitcnt lgkmcnt(0)")
    E(f"  s_barrier")
    E(f"  v_lshlrev_b32 v12, 2, v0")
    for w in range(NPW):
        E(f"  ds_read_b32 v{V_S+w}, v12 offset:{LDS_O + w*2048}")
    E(f"  s_cmp_lg_u32 s{S_W}, 0")
    E(f"  s_cbranch_scc1 L_epi_pr1")
    for w in range(NPW):
        E(f"  ds_read_b32 v{V_K+w}, v12 offset:{LDS_O + w*2048 + 448*4}")
    for w in range(NPW):
        E(f"  ds_read_b32 v{V_K+8+w}, v13 offset:{LDS_L + w*256}")
    E(f"L_epi_pr1:")
    def addr(tv, dst):
        E(f"  v_lshrrev_b32 v{V_V}, 5, v{tv}")
        E(f"  v_bfe_u32 v{V_V+1}, v{tv}, 2, 3")
        E(f"  v_and_b32 v{V_V+2}, 3, v{tv}")
        E(f"  v_lshrrev_b32 v{V_V+3}, 3, v{V_V}")
        E(f"  v_lshlrev_b32 v{V_V+3}, 7, v{V_V+3}")
        E(f"  v_and_b32 v{V_V}, 7, v{V_V}")
        E(f"  v_add_u32 v{V_V+3}, v{V_V+3}, v{V_V}")
        E(f"  v_lshl_add_u32 v{V_V+3}, v{V_V+2}, 3, v{V_V+3}")
        E(f"  v_lshrrev_b32 v{V_V}, 1, v{V_V+1}")
        E(f"  v_lshl_add_u32 v{V_V+3}, v{V_V}, 5, v{V_V+3}")
        E(f"  v_and_b32 v{V_V+1}, 1, v{V_V+1}")
        E(f"  v_lshlrev_b32 v{V_V+1}, {lgs+10}, v{V_V+1}")
        E(f"  v_lshl_add_u32 v{dst}, v{V_V+3}, 2, v{V_V+1}")
    for sb, dst in ((S_BL, S_T2), (S_BS, S_T3)):
        E(f"  s_lshl_b32 s{dst}, s{sb}, 4")
        if sb == S_BS and MIX:
            E(f"  s_xor_b32 s{S_T0}, s{S_KVH}, 1")
            E(f"  s_lshl_b32 s{S_T0}, s{S_T0}, 1")
        else:
            E(f"  s_lshl_b32 s{S_T0}, s{S_KVH}, 1")
        E(f"  s_add_u32 s{dst}, s{dst}, s{S_T0}")
        E(f"  s_lshl_b32 s{dst}, s{dst}, {lgs}")
        E(f"  s_add_u32 s{dst}, s{dst}, s{S_HALF}")
        E(f"  s_lshl_b32 s{dst}, s{dst}, 10")
    def twosum(base, da, db):
        E(f"  v_mul_f32 v{da}, s{SA}, v{base}")
        E(f"  v_mov_b32 v{db}, v{base}")
        for w in range(1, NPW):
            E(f"  v_fma_f32 v{da}, v{base+w}, s{SA+w}, v{da}")
            E(f"  v_add_f32 v{db}, v{db}, v{base+w}")
        E(f"  v_sub_f32 v{db}, v{db}, v{da}")
    addr(0, V_V+4)
    E(f"  s_waitcnt lgkmcnt(0)")
    def twosum_exact(base, da, db):
        E(f"  v_mov_b32 v{da}, 0")
        E(f"  v_mov_b32 v{db}, 0")
        for w in range(NPW):
            E(f"  v_fma_f32 v{da}, v{base+w}, s{SA+w}, v{da}")
            E(f"  s_xor_b32 s{S_T0}, s{SA+w}, 0x3f800000")
            E(f"  v_fma_f32 v{db}, v{base+w}, s{S_T0}, v{db}")
    twosum_exact(V_S, V_V+6, V_V+7)
    E(f"  buffer_store_dword v{V_V+6}, v{V_V+4}, s[{S_XSRD}:{S_XSRD+3}], s{S_T2} offen")
    E(f"  buffer_store_dword v{V_V+7}, v{V_V+4}, s[{S_XSRD}:{S_XSRD+3}], s{S_T3} offen")
    E(f"  s_cmp_lg_u32 s{S_W}, 0")
    E(f"  s_cbranch_scc1 L_epi_done")
    E(f"  v_add_u32 v12, 448, v{VL}")
    addr(12, V_V+5)
    twosum_exact(V_K, V_V+8, V_V+9)
    E(f"  buffer_store_dword v{V_V+8}, v{V_V+5}, s[{S_XSRD}:{S_XSRD+3}], s{S_T2} offen")
    E(f"  buffer_store_dword v{V_V+9}, v{V_V+5}, s[{S_XSRD}:{S_XSRD+3}], s{S_T3} offen")
    twosum_exact(V_K+8, 15, V_P+1)
    E(f"  v_lshlrev_b32 v12, {lgs+3}, v{VL}")
    E(f"  s_lshr_b32 s{S_T2}, s{S_T2}, 7")
    E(f"  s_lshr_b32 s{S_T3}, s{S_T3}, 7")
    E(f"  s_add_u32 s{S_T2}, s{S_T2}, {WS_ML_OFF}")
    E(f"  s_add_u32 s{S_T3}, s{S_T3}, {WS_ML_OFF}")
    E(f"  s_mov_b64 exec, 3")
    E(f"  buffer_store_dwordx2 v[14:15], v12, s[{S_XSRD}:{S_XSRD+3}], s{S_T2} offen")
    E(f"  buffer_store_dwordx2 v[{V_P}:{V_P+1}], v12, s[{S_XSRD}:{S_XSRD+3}], s{S_T3} offen")
    E(f"  s_branch L_epi_done")
    E(f"L_epi_sh:")
    E(f"  v_lshrrev_b32 v{VBL}, 1, v{VCOL}")
    E(f"  s_lshl_b32 s{S_T0}, s{S_BQ}, 3")
    E(f"  v_add_u32 v{VBL}, s{S_T0}, v{VBL}")
    E(f"  v_and_b32 v14, 1, v{VCOL}")
    E(f"  v_lshl_add_u32 v14, v{VBL}, 4, v14")
    E(f"  s_lshl_b32 s{S_T0}, s{S_KVW}, 1")
    E(f"  v_add_u32 v14, s{S_T0}, v14")
    E(f"  v_lshlrev_b32 v14, {lgs}, v14")
    E(f"  v_add_u32 v14, s{S_SLOT}, v14")
    E(f"  v_lshlrev_b32 v15, 10, v14")
    E(f"  v_lshl_add_u32 v15, v{VG}, 7, v15")
    E(f"  v_lshlrev_b32 v14, 3, v14")
    E(f"  v_add_u32 v14, {WS_ML_OFF}, v14")
    for hf in range(2):
        for r in range(4):
            base = V_K + (hf*4 + r) * 8
            for jj in range(8):
                E(f"  v_mov_b32 v{base+jj}, v{oreg(hf,jj)+r}")
    for hf in range(2):
        for r in range(4):
            base = V_K + (hf*4 + r) * 8
            for half in range(2):
                E(f"  buffer_store_dwordx4 {q4(base+4*half)}, v15, s[{S_XSRD}:{S_XSRD+3}], 0 offen offset:{hf*512 + r*32 + half*16}")
    E(f"  v_mov_b32 v12, v{V_M}")
    E(f"  v_mov_b32 v13, v{V_L}")
    E(f"  s_mov_b64 exec, 0xffff")
    E(f"  buffer_store_dwordx2 v[12:13], v14, s[{S_XSRD}:{S_XSRD+3}], 0 offen")
    E(f"  s_mov_b64 exec, -1")
    E(f"  s_barrier")
    E(f"  s_barrier")
    E(f"L_epi_done:")
    if STAMP:
        emit_stamp()
        E(f"  s_mov_b64 exec, -1")
        E(f"  s_lshl_b32 s99, s2, 3")
        E(f"  s_add_u32 s99, s99, s{S_W}")
        E(f"  s_lshl_b32 s99, s99, 8")
        E(f"  s_add_u32 s99, s99, 0xa00000")
        E(f"  v_and_b32 v253, 63, v0")
        E(f"  v_lshlrev_b32 v253, 2, v253")
        E(f"  v_add_u32 v253, s99, v253")
        E(f"  global_store_dword v253, v252, s[30:31]")
    E(f"L_main_end:")
    E(f"  s_endpgm")

def combine_kernel():
    MASKRAW = -998244352.0 * 16.0
    E(f".globl combine_kernel")
    E(f".p2align 8")
    E(f".type combine_kernel,@function")
    E(f"combine_kernel:")
    E(f"  s_cmp_ge_u32 s2, 128")
    E(f"  s_cbranch_scc1 L_cmb_end")
    E(f"  s_load_dwordx16 s[16:31], s[0:1], 0")
    E(f"  v_lshrrev_b32 v1, 6, v0")
    E(f"  v_and_b32 v2, 63, v0")
    E(f"  s_nop 0")
    E(f"  v_readfirstlane_b32 s3, v1")
    E(f"  s_lshl_b32 s4, s2, 2")
    E(f"  s_nop 2")
    E(f"  s_add_u32 s4, s4, s3")
    E(f"  s_mov_b32 s56, {f2u(C_SCALE):#x}")
    E(f"  s_waitcnt lgkmcnt(0)")
    E(f"  s_lshl_b32 s5, s4, {(NSLOT*8).bit_length()-1}")
    E(f"  s_add_u32 s5, s5, {WS_ML_OFF}")
    E(f"  s_load_dwordx16 s[32:47], s[30:31], s5")
    E(f"  s_add_u32 s5, s5, 64")
    E(f"  s_load_dwordx4 s[48:51], s[30:31], s5")
    E(f"  s_lshr_b32 s6, s4, 4")
    E(f"  s_lshl_b32 s7, s6, 2")
    E(f"  s_load_dword s52, s[24:25], s7")
    E(f"  s_mov_b32 s8, s30")
    E(f"  s_and_b32 s9, s31, 0xffff")
    E(f"  s_mov_b32 s10, {WS_BYTES}")
    E(f"  s_mov_b32 s11, 0x00020000")
    E(f"  s_lshl_b32 s12, s4, {10 + NSLOT.bit_length()-1}")
    E(f"  s_add_u32 s13, s12, 4096")
    E(f"  s_add_u32 s14, s12, 8192")
    E(f"  v_lshlrev_b32 v3, 4, v2")
    for s in range(NUSED):
        E(f"  buffer_load_dwordx4 v[{8+4*s}:{11+4*s}], v3, s[8:11], s{12 + (s>>2)} offen offset:{(s&3)*1024}")
    E(f"  s_waitcnt lgkmcnt(0)")
    E(f"  v_mov_b32 v4, s32")
    for s in range(1, NUSED):
        E(f"  v_max_f32 v4, s{32+2*s}, v4")
    E(f"  s_max_i32 s52, s52, 0")
    E(f"  s_min_i32 s52, s52, 2048")
    E(f"  s_sub_u32 s53, 2048, s52")
    E(f"  s_mov_b32 s54, 0")
    E(f"  s_cmp_eq_u32 s53, 0")
    E(f"  s_cbranch_scc1 L_cmb_fast")
    E(f"  v_cmp_gt_f32 vcc, {f2u(MASKRAW + 2048.0):#x}, v4")
    E(f"  s_nop 4")
    E(f"  s_cbranch_vccz L_cmb_fast")
    E(f"  s_mov_b32 s54, 1")
    E(f"  v_max_f32 v4, {f2u(MASKRAW):#x}, v4")
    E(f"L_cmb_fast:")
    E(f"  v_max_f32 v4, 0xff7fffff, v4")
    E(f"  v_mul_f32 v5, s56, v4")
    E(f"  v_mov_b32 v6, 0")
    A = 48
    assert 8 + 4*NUSED <= A
    for k in range(4):
        E(f"  v_mov_b32 v{A+k}, 0")
    E(f"  s_waitcnt vmcnt(0)")
    for s in range(NUSED):
        E(f"  v_mov_b32 v7, s{32+2*s}")
        E(f"  v_fma_f32 v7, v7, s56, -v5")
        E(f"  v_exp_f32 v7, v7")
        E(f"  s_nop 0")
        E(f"  v_fma_f32 v6, v7, s{33+2*s}, v6")
        for k in range(4):
            E(f"  v_fma_f32 v{A+k}, v7, v{8+4*s+k}, v{A+k}")
    E(f"  s_cmp_eq_u32 s54, 0")
    E(f"  s_cbranch_scc1 L_cmb_out")
    E(f"  v_mov_b32 v7, {f2u(MASKRAW):#x}")
    E(f"  v_fma_f32 v7, v7, s56, -v5")
    E(f"  v_exp_f32 v7, v7")
    E(f"  v_cvt_f32_u32 v52, s53")
    E(f"  v_fma_f32 v6, v7, v52, v6")
    E(f"  s_mov_b32 s8, s20")
    E(f"  s_and_b32 s9, s21, 0xffff")
    E(f"  s_mov_b32 s10, {KV_BYTES}")
    E(f"  s_mov_b32 s11, 0x00020000")
    E(f"  s_and_b32 s13, s4, 15")
    E(f"  s_lshr_b32 s13, s13, 1")
    E(f"  s_lshl_b32 s13, s13, 9")
    E(f"  v_lshlrev_b32 v3, 3, v2")
    for k in range(4):
        E(f"  v_mov_b32 v{54+k}, 0")
    E(f"L_cmb_slow:")
    E(f"  s_lshr_b32 s14, s52, 4")
    E(f"  s_lshl_b32 s14, s14, 2")
    E(f"  s_lshl_b32 s15, s6, 9")
    E(f"  s_add_u32 s14, s14, s15")
    E(f"  s_load_dword s15, s[22:23], s14")
    E(f"  s_waitcnt lgkmcnt(0)")
    E(f"  s_lshl_b32 s15, s15, 16")
    E(f"  s_and_b32 s14, s52, 15")
    E(f"  s_lshl_b32 s14, s14, 12")
    E(f"  s_add_u32 s15, s15, s14")
    E(f"  s_add_u32 s15, s15, s13")
    E(f"  buffer_load_dwordx2 v[58:59], v3, s[8:11], s15 offen")
    E(f"  s_waitcnt vmcnt(0)")
    E(f"  v_lshlrev_b32 v60, 16, v58")
    E(f"  v_and_b32 v61, 0xffff0000, v58")
    E(f"  v_lshlrev_b32 v62, 16, v59")
    E(f"  v_and_b32 v63, 0xffff0000, v59")
    for k in range(4):
        E(f"  v_add_f32 v{54+k}, v{54+k}, v{60+k}")
    E(f"  s_add_u32 s52, s52, 1")
    E(f"  s_cmp_lt_u32 s52, 2048")
    E(f"  s_cbranch_scc1 L_cmb_slow")
    for k in range(4):
        E(f"  v_fma_f32 v{A+k}, v7, v{54+k}, v{A+k}")
    E(f"L_cmb_out:")
    E(f"  v_rcp_f32 v6, v6")
    E(f"  s_nop 0")
    for k in range(4):
        E(f"  v_mul_f32 v{A+k}, v{A+k}, v6")
    E(f"  v_cvt_pk_bf16_f32 v52, v{A}, v{A+1}")
    E(f"  v_cvt_pk_bf16_f32 v53, v{A+2}, v{A+3}")
    E(f"  s_mov_b32 s8, s26")
    E(f"  s_and_b32 s9, s27, 0xffff")
    E(f"  s_mov_b32 s10, {512*512}")
    E(f"  s_mov_b32 s11, 0x00020000")
    E(f"  s_lshl_b32 s12, s4, 9")
    E(f"  v_lshlrev_b32 v3, 3, v2")
    E(f"  buffer_store_dwordx2 v[52:53], v3, s[8:11], s12 offen")
    E(f"L_cmb_end:")
    E(f"  s_endpgm")

def kd(name, vgpr, sgpr):
    E(f".amdhsa_kernel {name}")
    E(f"  .amdhsa_next_free_vgpr {vgpr}")
    E(f"  .amdhsa_next_free_sgpr {sgpr}")
    E(f"  .amdhsa_accum_offset {(vgpr+3)//4*4}")
    E(f"  .amdhsa_group_segment_fixed_size 0")
    E(f"  .amdhsa_kernarg_size 64")
    E(f"  .amdhsa_user_sgpr_count 2")
    E(f"  .amdhsa_user_sgpr_kernarg_segment_ptr 1")
    E(f"  .amdhsa_system_sgpr_workgroup_id_x 1")
    E(f"  .amdhsa_float_denorm_mode_32 3")
    E(f".end_amdhsa_kernel")

hdr = open("cdna_kernels/" + NAME + ".s.ref").read().split("; Override launch")[0]
E(hdr.rstrip())
E(f"; @launch kernel={NAME}_kernel grid=({NWG},1,1) block=({NW*64},1,1) lds={LDS_BYTES}")
E(f"; @launch kernel=combine_kernel grid=(128,1,1) block=(256,1,1) lds=0")
E('.amdgcn_target "amdgcn-amd-amdhsa--gfx950"')
E(".text")
main_kernel()
combine_kernel()
E('.section .rodata,"a"')
E(".p2align 6")
kd(f"{NAME}_kernel", V_END, S_END)
E(".p2align 6")
kd("combine_kernel", 64, 60)
open(sys.argv[1] if len(sys.argv) > 1 else "cdna_kernels/" + NAME + ".s", "w").write("\n".join(out) + "\n")
```

```python
import sys, os, struct
STAMP = int(os.environ.get('STAMP', '0'))
SHFIRST = int(os.environ.get('SHFIRST', '0'))
MIX = int(os.environ.get('MIX', '2'))
MOVREL = int(os.environ.get('MOVREL', '1'))
NATORD = int(os.environ.get('NATORD', '0'))
ROT = int(os.environ.get('ROT', '0'))
NAME = "standalone__paged_block_table_kv_radixattention__sampling"
NW = 8
NPW = 7
NWG = 256
SH_PARTS = 8
NSLOT = 16
NUSED = 10
WS_O_BYTES = 512 * NSLOT * 1024
WS_ML_OFF = WS_O_BYTES
WS_BYTES = WS_O_BYTES + 512 * NSLOT * 8
KV_BYTES = 2112 * 65536
C_SCALE = 0.0625 * 1.4426950408889634
LDS_LIST = 0
LDS_M = 3072
LDS_L = 5120
LDS_KEY = 7168
LDS_O = 7424
LDS_BYTES = LDS_O + NPW * 2048

def f2u(f):
    return struct.unpack("<I", struct.pack("<f", f))[0]
out = []
def E(s=""):
    out.append(s)

V_KOFF, V_VOFF, V_PHYS, V_J16, V_REM, V_M, V_L = 1, 2, 3, 4, 5, 6, 7
V_T = 8; V_S = 16; V_P = 24; V_Q = 28; V_O = 60; V_K = 124; V_V = 188
V_END = 256 if STAMP else 252
S_KSRD, S_VSRD, S_XSRD = 4, 8, 12
S_ARG = 16
S_W, S_KVH, S_SH, S_BQ, S_KVHOFF = 32, 33, 34, 35, 36
S_NSTEP, S_IDX, S_JA, S_JB = 37, 38, 39, 40
S_OFFA, S_OFFB = 41, 42
S_B = 43
S_VO = 44
S_C, S_SELLO, S_SELHI = 52, 53, 54
S_T0, S_T1, S_T2, S_T3 = 55, 56, 57, 58
S_LIST = 59
S_MASK = 60
S_CTX8 = 76
S_NJA, S_NJB, S_N = 84, 85, 86
S_TK = 88
S_BASE, S_PART, S_SLOT = 92, 93, 94
S_BL, S_BS, S_W1, S_HALF, S_P, S_N1, S_N2, S_ST = 76, 77, 78, 79, 80, 81, 82, 83
S_NB, S_STRIDE = 87, 95
S_KVW = 3
S_END = 102 if STAMP else 96

def kreg(tile, i): return V_K + tile * 32 + i * 4
def vreg(tile, e, hf): return V_V + ((tile * 4 + e) * 2 + hf) * 4
def oreg(hf, jj): return V_O + (hf * 8 + jj) * 4
def q4(r): return f"v[{r}:{r+3}]"

def emit_stamp():
    if not STAMP: return
    E(f"  s_memrealtime s[96:97]")
    E(f"  s_waitcnt lgkmcnt(0)")
    E(f"  s_mov_b32 m0, s98")
    E(f"  s_nop 0")
    E(f"  v_writelane_b32 v252, s96, m0")
    E(f"  s_add_u32 s98, s98, 1")
    E(f"  s_and_b32 s98, s98, 63")

def emit_next_offsets():
    E(f"  s_lshl_b32 s{S_T0}, s{S_IDX}, 1")
    E(f"  s_and_b32 s{S_T0}, s{S_T0}, 63")
    E(f"  s_add_u32 s{S_T1}, s{S_T0}, 1")
    E(f"  v_readlane_b32 s{S_OFFA}, v{V_PHYS}, s{S_T0}")
    E(f"  v_readlane_b32 s{S_OFFB}, v{V_PHYS}, s{S_T1}")
    E(f"  v_readlane_b32 s{S_NJA}, v{V_J16}, s{S_T0}")
    E(f"  v_readlane_b32 s{S_NJB}, v{V_J16}, s{S_T1}")
    E(f"  s_cmp_lt_u32 s{S_IDX}, s{S_NSTEP}")
    E(f"  s_nop 2")
    E(f"  s_cselect_b32 s{S_OFFA}, s{S_OFFA}, 2112")
    E(f"  s_cselect_b32 s{S_OFFB}, s{S_OFFB}, 2112")
    E(f"  s_lshl_b32 s{S_OFFA}, s{S_OFFA}, 16")
    E(f"  s_lshl_b32 s{S_OFFB}, s{S_OFFB}, 16")
    E(f"  s_add_u32 s{S_OFFA}, s{S_OFFA}, s{S_KVHOFF}")
    E(f"  s_add_u32 s{S_OFFB}, s{S_OFFB}, s{S_KVHOFF}")
    for t, so in ((0, S_OFFA), (1, S_OFFB)):
        for e in range(4):
            if e == 0: E(f"  s_mov_b32 s{S_VO + t*4}, s{so}")
            else: E(f"  s_add_u32 s{S_VO + t*4 + e}, s{so}, {e*4096}")

def emit_k_loads(nt):
    for t, so in ((0, S_OFFA), (1, S_OFFB)):
        for i in range(8):
            E(f"  buffer_load_dwordx4 {q4(kreg(t,i))}, v{V_KOFF}, s[{S_KSRD}:{S_KSRD+3}], s{so} offen offset:{i*64}{nt}")

def emit_v_loads(nt):
    for t in range(2):
        for e in range(4):
            for hf in range(2):
                E(f"  buffer_load_dwordx4 {q4(vreg(t,e,hf))}, v{V_VOFF}, s[{S_VSRD}:{S_VSRD+3}], s{S_VO+t*4+e} offen offset:{hf*256}{nt}")

def emit_xreduce(reg, tmp, op):
    E(f"  v_mov_b32 v{tmp}, v{reg}")
    E(f"  s_nop 1")
    E(f"  v_permlane32_swap_b32 v{reg}, v{tmp}")
    E(f"  s_nop 1")
    E(f"  {op} v{reg}, v{reg}, v{tmp}")
    E(f"  v_mov_b32 v{tmp}, v{reg}")
    E(f"  s_nop 1")
    E(f"  v_permlane16_swap_b32 v{reg}, v{tmp}")
    E(f"  s_nop 1")
    E(f"  {op} v{reg}, v{reg}, v{tmp}")

def emit_step(nt, tag):
    SA, SB = V_S, V_S + 4
    E(f"  s_waitcnt vmcnt(16)")
    emit_stamp()
    for i in range(8):
        for t, sr in ((0, SA), (1, SB)):
            c = "0" if i == 0 else q4(sr)
            E(f"  v_mfma_f32_16x16x32_bf16 {q4(sr)}, {q4(kreg(t,i))}, {q4(V_Q+4*i)}, {c}")
    E(f"  s_add_u32 s{S_IDX}, s{S_IDX}, s{S_STRIDE}")
    emit_next_offsets()
    emit_k_loads(nt)
    E(f"  v_subrev_u32 v{V_T}, s{S_JA}, v{V_REM}")
    E(f"  v_subrev_u32 v{V_T+1}, s{S_JB}, v{V_REM}")
    for r in range(4):
        E(f"  v_cmp_gt_i32 s[{S_MASK+2*r}:{S_MASK+2*r+1}], v{V_T}, {r}")
    for r in range(4):
        E(f"  v_cmp_gt_i32 s[{S_MASK+8+2*r}:{S_MASK+8+2*r+1}], v{V_T+1}, {r}")
    E(f"  v_mov_b32 v{V_T+2}, 0xff800000")
    E(f"  s_nop 1")
    for r in range(8):
        E(f"  v_cndmask_b32 v{V_S+r}, v{V_T+2}, v{V_S+r}, s[{S_MASK+2*r}:{S_MASK+2*r+1}]")
    E(f"  v_max3_f32 v{V_T}, v{V_S}, v{V_S+1}, v{V_S+2}")
    E(f"  v_max3_f32 v{V_T+1}, v{V_S+3}, v{V_S+4}, v{V_S+5}")
    E(f"  v_max3_f32 v{V_T}, v{V_S+6}, v{V_S+7}, v{V_T}")
    E(f"  v_max_f32 v{V_T}, v{V_T}, v{V_T+1}")
    emit_xreduce(V_T, V_T+1, "v_max_f32")
    E(f"  v_max_f32 v{V_T}, v{V_M}, v{V_T}")
    E(f"  v_max_f32 v{V_T+1}, 0xff7fffff, v{V_T}")
    E(f"  v_mul_f32 v{V_T+1}, s{S_C}, v{V_T+1}")
    E(f"  v_fma_f32 v{V_T+2}, v{V_M}, s{S_C}, -v{V_T+1}")
    E(f"  v_exp_f32 v{V_T+2}, v{V_T+2}")
    E(f"  v_mov_b32 v{V_M}, v{V_T}")
    for r in range(8):
        E(f"  v_fma_f32 v{V_S+r}, v{V_S+r}, s{S_C}, -v{V_T+1}")
    for r in range(8):
        E(f"  v_exp_f32 v{V_S+r}, v{V_S+r}")
    E(f"  v_cmp_neq_f32 vcc, 1.0, v{V_T+2}")
    E(f"  v_mul_f32 v{V_L}, v{V_L}, v{V_T+2}")
    E(f"  v_add_f32 v{V_T+3}, v{V_S}, v{V_S+1}")
    E(f"  v_add_f32 v{V_T+4}, v{V_S+2}, v{V_S+3}")
    E(f"  v_add_f32 v{V_T+5}, v{V_S+4}, v{V_S+5}")
    E(f"  v_add_f32 v{V_T+6}, v{V_S+6}, v{V_S+7}")
    E(f"  v_add_f32 v{V_T+3}, v{V_T+3}, v{V_T+4}")
    E(f"  v_add_f32 v{V_T+5}, v{V_T+5}, v{V_T+6}")
    E(f"  v_add_f32 v{V_T+3}, v{V_T+3}, v{V_T+5}")
    E(f"  v_add_f32 v{V_L}, v{V_L}, v{V_T+3}")
    for k in range(4):
        E(f"  v_cvt_pk_bf16_f32 v{V_P+k}, v{V_S+2*k}, v{V_S+2*k+1}")
    E(f"  s_cbranch_vccz L_noscale_{tag}")
    for r in range(64):
        E(f"  v_mul_f32 v{V_O+r}, v{V_O+r}, v{V_T+2}")
    E(f"L_noscale_{tag}:")
    E(f"  s_waitcnt vmcnt(16)")
    emit_stamp()
    n = 0
    for hf in range(2):
        for jj in range(8):
            tq = V_T + (n & 1) * 4
            sel = S_SELHI if (jj & 1) else S_SELLO
            w = jj >> 1
            for t in range(2):
                for pp in range(2):
                    lo = vreg(t, 2*pp, hf) + w
                    hi = vreg(t, 2*pp+1, hf) + w
                    E(f"  v_perm_b32 v{tq + t*2 + pp}, v{hi}, v{lo}, s{sel}")
            E(f"  s_nop 1")
            E(f"  v_mfma_f32_16x16x32_bf16 {q4(oreg(hf,jj))}, {q4(tq)}, {q4(V_P)}, {q4(oreg(hf,jj))}")
            n += 1
    emit_v_loads(nt)
    E(f"  s_mov_b32 s{S_JA}, s{S_NJA}")
    E(f"  s_mov_b32 s{S_JB}, s{S_NJB}")

def main_kernel():
    E(f".globl {NAME}_kernel")
    E(f".p2align 8")
    E(f".type {NAME}_kernel,@function")
    E(f"{NAME}_kernel:")
    E(f"  s_cmp_ge_u32 s2, {NWG}")
    E(f"  s_cbranch_scc1 L_main_end")
    if STAMP:
        E(f"  s_mov_b32 s98, 0")
        E(f"  v_mov_b32 v252, 0")
    emit_stamp()
    E(f"  s_load_dwordx16 s[{S_ARG}:{S_ARG+15}], s[0:1], 0")
    VL, VCOL, VG, VBL = 8, 9, 10, 11
    VCTX, VKEY, VRANK = 16, 17, 18
    KB = V_Q
    TB = V_K; R0 = V_K + 64; OWN = V_K + 68; OWN2 = V_K + 72
    if SHFIRST:
        E(f"  v_add_u32 v0, 448, v0")
        E(f"  v_and_b32 v0, 511, v0")
    E(f"  v_and_b32 v{VL}, 63, v0")
    E(f"  v_lshrrev_b32 v12, 6, v0")
    E(f"  v_and_b32 v{VCOL}, 15, v0")
    E(f"  v_readfirstlane_b32 s{S_W}, v12")
    E(f"  v_lshrrev_b32 v{VG}, 4, v{VL}")
    E(f"  s_lshr_b32 s{S_B}, s2, 3")
    if ROT:
        E(f"  s_add_u32 s{S_KVH}, s2, s{S_B}")
        E(f"  s_and_b32 s{S_KVH}, s{S_KVH}, 7")
    else:
        E(f"  s_and_b32 s{S_KVH}, s2, 7")
    E(f"  s_lshl_b32 s{S_KVHOFF}, s{S_KVH}, 9")
    E(f"  s_mov_b32 s{S_C}, {f2u(C_SCALE):#x}")
    E(f"  s_mov_b32 s{S_SELLO}, 0x05040100")
    E(f"  s_mov_b32 s{S_SELHI}, 0x07060302")
    E(f"  v_and_b32 v12, 31, v{VL}")
    E(f"  v_lshlrev_b32 v14, 2, v12")
    E(f"  v_lshlrev_b32 v12, 4, v12")
    E(f"  v_lshrrev_b32 v13, 5, v{VL}")
    E(f"  v_lshl_add_u32 v13, v13, 9, v12")
    E(f"  s_mov_b32 s{S_T2}, 4096")
    E(f"  s_mov_b32 s{S_T3}, 8192")
    E(f"  s_mov_b32 s{S_BASE}, 12288")
    E(f"  s_cmp_eq_u32 s{S_W}, {NPW}")
    E(f"  s_cselect_b32 s{S_SH}, 1, 0")
    E(f"  s_waitcnt lgkmcnt(0)")
    if STAMP >= 2: emit_stamp()
    E(f"  global_load_dword v{VCTX}, v14, s[24:25]")
    for srd, lo, nb in ((S_XSRD, 22, 16384), (S_KSRD, 18, KV_BYTES), (S_VSRD, 20, KV_BYTES)):
        E(f"  s_mov_b32 s{srd}, s{lo}")
        E(f"  s_and_b32 s{srd+1}, s{lo+1}, 0xffff")
        E(f"  s_mov_b32 s{srd+2}, {nb}")
        E(f"  s_mov_b32 s{srd+3}, 0x00020000")
    so = ["0", f"s{S_T2}", f"s{S_T3}", f"s{S_BASE}"]
    E(f"  buffer_load_dwordx4 {q4(R0)}, v12, s[{S_XSRD}:{S_XSRD+3}], 0 offen")
    for i in range(16):
        E(f"  buffer_load_dwordx4 {q4(TB+4*i)}, v13, s[{S_XSRD}:{S_XSRD+3}], {so[i>>2]} offen offset:{(i&3)*1024}")
    E(f"  v_lshlrev_b32 v{V_KOFF}, 12, v{VCOL}")
    E(f"  v_lshl_add_u32 v{V_KOFF}, v{VG}, 4, v{V_KOFF}")
    E(f"  v_lshlrev_b32 v{V_VOFF}, 14, v{VG}")
    E(f"  v_lshl_add_u32 v{V_VOFF}, v{VCOL}, 4, v{V_VOFF}")
    E(f"  v_mov_b32 v{V_M}, 0xff800000")
    E(f"  v_mov_b32 v{V_L}, 0")
    E(f"  s_waitcnt vmcnt(17)")
    if STAMP >= 2: emit_stamp()
    E(f"  v_max_i32 v{VCTX}, 0, v{VCTX}")
    E(f"  v_min_i32 v{VCTX}, 2048, v{VCTX}")
    E(f"  s_cmp_eq_u32 s{S_SH}, 1")
    E(f"  s_cbranch_scc1 L_pro_shared")
    E(f"  s_lshr_b32 s{S_P}, s{S_B}, 1")
    E(f"  s_and_b32 s{S_HALF}, s{S_B}, 1")
    E(f"  v_and_b32 v15, 31, v{VL}")
    E(f"  v_sub_u32 v15, 31, v15")
    E(f"  v_lshl_add_u32 v{VKEY}, v{VCTX}, 5, v15")
    E(f"  ds_write_b32 v14, v{VKEY} offset:{LDS_KEY}")
    E(f"  v_lshrrev_b32 v15, 5, v{VL}")
    E(f"  v_lshlrev_b32 v15, 6, v15")
    E(f"  v_mov_b32 v{VRANK}, 0")
    E(f"  s_waitcnt lgkmcnt(0)")
    for k in range(4):
        E(f"  ds_read_b128 {q4(KB+4*k)}, v15 offset:{LDS_KEY + 16*k}")
    E(f"  s_waitcnt lgkmcnt(0)")
    for bt in range(2):
        for k in range(8):
            E(f"  v_cmp_gt_u32 s[{S_MASK+2*k}:{S_MASK+2*k+1}], v{KB+bt*8+k}, v{VKEY}")
        E(f"  s_nop 1")
        for k in range(8):
            E(f"  v_addc_co_u32 v{VRANK}, vcc, 0, v{VRANK}, s[{S_MASK+2*k}:{S_MASK+2*k+1}]")
    E(f"  v_mov_b32 v15, v{VRANK}")
    E(f"  s_nop 1")
    E(f"  v_permlane32_swap_b32 v{VRANK}, v15")
    E(f"  s_nop 1")
    E(f"  v_add_u32 v{VRANK}, v{VRANK}, v15")
    E(f"  s_sub_u32 s{S_T0}, 31, s{S_P}")
    E(f"  v_cmp_eq_u32 s[{S_MASK}:{S_MASK+1}], s{S_P}, v{VRANK}")
    E(f"  v_cmp_eq_u32 s[{S_MASK+2}:{S_MASK+3}], s{S_T0}, v{VRANK}")
    E(f"  s_nop 3")
    E(f"  s_ff1_i32_b32 s{S_BL}, s{S_MASK}")
    E(f"  s_ff1_i32_b32 s{S_BS}, s{S_MASK+2}")
    if not MOVREL:
        E(f"  s_lshl_b32 s{S_T0}, s{S_BL}, 9")
        E(f"  s_lshl_b32 s{S_T1}, s{S_BS}, 9")
        E(f"  buffer_load_dwordx4 {q4(OWN)}, v12, s[{S_XSRD}:{S_XSRD+3}], s{S_T0} offen")
        E(f"  buffer_load_dwordx4 {q4(OWN2)}, v12, s[{S_XSRD}:{S_XSRD+3}], s{S_T1} offen")
    E(f"  v_readlane_b32 s{S_N1}, v{VCTX}, s{S_BL}")
    E(f"  v_readlane_b32 s{S_N2}, v{VCTX}, s{S_BS}")
    if not MOVREL:
        E(f"  s_waitcnt vmcnt(2)")
    else:
        if STAMP >= 2: emit_stamp()
        E(f"  s_waitcnt vmcnt(0)")
        if STAMP >= 2: emit_stamp()
        for sb, dst in ((S_BL, OWN), (S_BS, OWN2)):
            E(f"  s_lshr_b32 s{S_T0}, s{sb}, 1")
            E(f"  s_lshl_b32 s{S_T1}, s{S_T0}, 2")
            E(f"  s_and_b32 s{S_T0}, s{sb}, 1")
            E(f"  s_cmp_eq_u32 s{S_T0}, 0")
            E(f"  s_cselect_b64 vcc, -1, 0")
            E(f"  s_set_gpr_idx_on s{S_T1}, gpr_idx(SRC0)")
            E(f"  s_nop 1")
            for c in range(4):
                E(f"  v_mov_b32 v{dst+c}, v{TB+c}")
            E(f"  s_nop 0")
            E(f"  s_set_gpr_idx_off")
            E(f"  s_nop 0")
            for c in range(4):
                E(f"  v_mov_b32 v{24+c}, v{dst+c}")
            E(f"  s_nop 1")
            for c in range(4):
                E(f"  v_permlane32_swap_b32 v{dst+c}, v{24+c}")
            E(f"  s_nop 1")
            for c in range(4):
                E(f"  v_cndmask_b32 v{dst+c}, v{24+c}, v{dst+c}, vcc")
    E(f"  s_branch L_pro_common")
    E(f"L_pro_shared:")
    E(f"  s_lshr_b32 s{S_PART}, s{S_B}, 2")
    E(f"  s_and_b32 s{S_BQ}, s{S_B}, 3")
    E(f"  s_add_u32 s{S_SLOT}, s{S_PART}, 2")
    E(f"  s_lshl_b32 s{S_T0}, s{S_BQ}, 3")
    E(f"  s_mov_b32 s{S_NB}, 0")
    for k in range(8):
        E(f"  s_add_u32 s{S_T1}, s{S_T0}, {k}")
        E(f"  v_readlane_b32 s{S_T2}, v{VCTX}, s{S_T1}")
        E(f"  s_nop 3")
        E(f"  s_max_u32 s{S_NB}, s{S_NB}, s{S_T2}")
    E(f"  s_add_u32 s{S_NB}, s{S_NB}, 15")
    E(f"  s_lshr_b32 s{S_NB}, s{S_NB}, 4")
    E(f"  v_lshrrev_b32 v{VBL}, 1, v{VCOL}")
    E(f"  v_add_u32 v{VBL}, s{S_T0}, v{VBL}")
    E(f"  s_waitcnt vmcnt(0)")
    E(f"L_pro_common:")
    for c in range(4):
        E(f"  v_xor_b32 v{20+c}, v{TB+c}, v{R0+c}")
        for i in range(1, 16):
            E(f"  v_xor_b32 v{TB+4*i+c}, v{TB+4*i+c}, v{R0+c}")
        for i in range(1, 16, 2):
            if i + 1 < 16: E(f"  v_or3_b32 v{20+c}, v{20+c}, v{TB+4*i+c}, v{TB+4*(i+1)+c}")
            else: E(f"  v_or_b32 v{20+c}, v{20+c}, v{TB+4*i+c}")
    for c in range(4):
        E(f"  v_cmp_ne_u32 s[{S_MASK+2*c}:{S_MASK+2*c+1}], 0, v{20+c}")
    E(f"  v_and_b32 v{TB}, 31, v{VL}")
    E(f"  v_lshlrev_b32 v{TB}, 2, v{TB}")
    for c in range(4):
        E(f"  v_add_u32 v{TB+1+c}, {c}, v{TB}")
    for c in range(4):
        E(f"  s_or_b32 s{S_TK+c}, s{S_MASK+2*c}, s{S_MASK+2*c+1}")
    E(f"  s_cmp_eq_u32 s{S_SH}, 1")
    E(f"  s_cbranch_scc1 L_pro_shared2")
    def count(sctx, dst):
        E(f"  s_add_u32 s{sctx}, s{sctx}, 15")
        E(f"  s_lshr_b32 s{sctx}, s{sctx}, 4")
        E(f"  s_mov_b32 s{dst}, 0")
        for c in range(4):
            E(f"  s_add_u32 s{S_T0}, s{sctx}, {3-c}")
            E(f"  s_lshr_b32 s{S_T0}, s{S_T0}, 2")
            E(f"  s_lshl_b64 s[{S_MASK}:{S_MASK+1}], 1, s{S_T0}")
            E(f"  s_sub_u32 s{S_MASK}, s{S_MASK}, 1")
            E(f"  s_and_b32 s{S_MASK}, s{S_MASK}, s{S_TK+c}")
            E(f"  s_bcnt1_i32_b32 s{S_T0}, s{S_MASK}")
            E(f"  s_add_u32 s{dst}, s{dst}, s{S_T0}")
    count(S_N1, S_T2)
    count(S_N2, S_T3)
    E(f"  s_add_u32 s{S_T2}, s{S_T2}, 1")
    E(f"  s_lshr_b32 s{S_T2}, s{S_T2}, 1")
    E(f"  s_add_u32 s{S_T3}, s{S_T3}, 1")
    E(f"  s_lshr_b32 s{S_T3}, s{S_T3}, 1")
    E(f"  s_add_u32 s{S_MASK}, s{S_T2}, 1")
    E(f"  s_lshr_b32 s{S_MASK}, s{S_MASK}, 1")
    E(f"  s_lshr_b32 s{S_MASK+1}, s{S_T3}, 1")
    E(f"  s_sub_u32 s{S_MASK+2}, s{S_T2}, s{S_MASK}")
    E(f"  s_sub_u32 s{S_MASK+3}, s{S_T3}, s{S_MASK+1}")
    E(f"  s_cmp_eq_u32 s{S_HALF}, 0")
    E(f"  s_cselect_b32 s{S_MASK+4}, s{S_MASK}, s{S_MASK+2}")
    E(f"  s_cselect_b32 s{S_MASK+5}, s{S_MASK+1}, s{S_MASK+3}")
    E(f"  s_cselect_b32 s{S_MASK+6}, 0, s{S_MASK}")
    E(f"  s_cselect_b32 s{S_MASK+7}, 0, s{S_MASK+1}")
    E(f"  s_add_u32 s{S_T0}, s{S_MASK+4}, s{S_MASK+5}")
    E(f"  s_mul_i32 s{S_T1}, s{S_MASK+4}, 14")
    E(f"  s_mov_b32 s{S_W1}, 0")
    E(f"  s_mov_b32 s{S_T2}, s{S_T0}")
    for k in range(7):
        E(f"  s_cmp_le_u32 s{S_T2}, s{S_T1}")
        E(f"  s_addc_u32 s{S_W1}, s{S_W1}, 0")
        if k < 6:
            E(f"  s_add_u32 s{S_T2}, s{S_T2}, s{S_T0}")
            E(f"  s_add_u32 s{S_T2}, s{S_T2}, s{S_T0}")
    E(f"  s_cmp_lg_u32 s{S_MASK+4}, 0")
    E(f"  s_cselect_b32 s{S_T2}, 1, 0")
    E(f"  s_max_u32 s{S_W1}, s{S_W1}, s{S_T2}")
    E(f"  s_cmp_lg_u32 s{S_MASK+5}, 0")
    E(f"  s_cselect_b32 s{S_T2}, 6, 7")
    E(f"  s_min_u32 s{S_W1}, s{S_W1}, s{S_T2}")
    E(f"  s_sub_u32 s{S_T0}, s{S_W}, s{S_W1}")
    E(f"  s_sub_u32 s{S_T1}, {NPW}, s{S_W1}")
    E(f"  s_cmp_lt_u32 s{S_W}, s{S_W1}")
    E(f"  s_cselect_b32 s{S_B}, s{S_BL}, s{S_BS}")
    E(f"  s_cselect_b32 s{S_NB}, s{S_N1}, s{S_N2}")
    E(f"  s_cselect_b32 s{S_NSTEP}, s{S_MASK+4}, s{S_MASK+5}")
    E(f"  s_cselect_b32 s{S_ST}, s{S_MASK+6}, s{S_MASK+7}")
    E(f"  s_cselect_b32 s{S_IDX}, s{S_W}, s{S_T0}")
    E(f"  s_cselect_b32 s{S_STRIDE}, s{S_W1}, s{S_T1}")
    E(f"  s_cselect_b32 s{S_LIST}, 0, 1024")
    E(f"  s_cselect_b32 s{S_KVW}, 0, {1 if MIX else 0}")
    E(f"  s_cselect_b64 vcc, -1, 0")
    E(f"  s_xor_b32 s{S_KVW}, s{S_KVW}, s{S_KVH}")
    E(f"  s_lshl_b32 s{S_KVHOFF}, s{S_KVW}, 9")
    E(f"  v_mov_b32 v{VBL}, s{S_B}")
    E(f"  s_waitcnt vmcnt(0)")
    for c in range(4):
        E(f"  v_cndmask_b32 v{OWN+c}, v{OWN2+c}, v{OWN+c}, vcc")
    E(f"  s_mov_b32 s{S_T1}, 0")
    E(f"  s_branch L_pro_common2")
    E(f"L_pro_shared2:")
    for c in range(4):
        E(f"  v_mov_b32 v{OWN+c}, v{R0+c}")
    E(f"  s_mov_b32 s{S_LIST}, 2048")
    E(f"  s_mov_b32 s{S_T1}, -1")
    if MIX >= 2:
        E(f"  s_xor_b32 s{S_KVW}, s{S_KVH}, 1")
        E(f"  s_lshl_b32 s{S_KVHOFF}, s{S_KVW}, 9")
    else:
        E(f"  s_mov_b32 s{S_KVW}, s{S_KVH}")
    E(f"L_pro_common2:")
    if STAMP >= 2: emit_stamp()
    E(f"  v_and_b32 v14, 1, v{VCOL}")
    E(f"  v_lshl_add_u32 v14, v{VBL}, 4, v14")
    E(f"  s_lshl_b32 s{S_T0}, s{S_KVW}, 1")
    E(f"  v_add_u32 v14, s{S_T0}, v14")
    E(f"  v_lshlrev_b32 v15, 9, v14")
    E(f"  v_lshl_add_u32 v15, v{VG}, 4, v15")
    for i in range(8):
        E(f"  global_load_dwordx4 {q4(V_Q+4*i)}, v15, s[16:17] offset:{i*64}")
    E(f"  v_lshlrev_b32 v14, 2, v{VBL}")
    E(f"  ds_bpermute_b32 v{V_REM}, v14, v{VCTX}")
    for c in range(4):
        E(f"  v_cmp_gt_u32 s[{S_MASK+8+2*c}:{S_MASK+8+2*c+1}], s{S_NB}, v{TB+1+c}")
    E(f"  s_nop 3")
    for c in range(4):
        E(f"  s_xor_b32 s{S_TK+c}, s{S_TK+c}, s{S_T1}")
        E(f"  s_and_b32 s{S_TK+c}, s{S_TK+c}, s{S_MASK+8+2*c}")
    E(f"  s_mov_b32 s{S_N}, 0")
    if NATORD:
        E(f"  v_mbcnt_lo_u32_b32 v13, s{S_TK}, 0")
        for c in range(1, 4):
            E(f"  v_mbcnt_lo_u32_b32 v13, s{S_TK+c}, v13")
    for c in range(4):
        if NATORD:
            if c > 0:
                E(f"  v_and_b32 v12, 31, v{VL}")
                E(f"  v_lshrrev_b32 v12, v12, s{S_TK+c-1}")
                E(f"  v_and_b32 v12, 1, v12")
                E(f"  v_add_u32 v13, v13, v12")
            E(f"  v_lshlrev_b32 v12, 3, v13")
        else:
            E(f"  v_mbcnt_lo_u32_b32 v12, s{S_TK+c}, 0")
            E(f"  v_add_u32 v12, s{S_N}, v12")
            E(f"  v_lshlrev_b32 v12, 3, v12")
        E(f"  v_add_u32 v12, s{S_LIST}, v12")
        E(f"  v_mov_b32 v14, v{OWN+c}")
        E(f"  v_lshlrev_b32 v15, 4, v{TB+1+c}")
        E(f"  s_mov_b32 exec_lo, s{S_TK+c}")
        E(f"  s_mov_b32 exec_hi, 0")
        E(f"  ds_write_b64 v12, v[14:15]")
        E(f"  s_mov_b64 exec, -1")
        E(f"  s_bcnt1_i32_b32 s{S_T0}, s{S_TK+c}")
        E(f"  s_add_u32 s{S_N}, s{S_N}, s{S_T0}")
    E(f"  s_cmp_eq_u32 s{S_SH}, 0")
    E(f"  s_cbranch_scc1 L_pro_common3")
    E(f"  s_add_u32 s{S_T0}, s{S_N}, 1")
    E(f"  s_lshr_b32 s{S_T0}, s{S_T0}, 1")
    E(f"  s_lshr_b32 s{S_T1}, s{S_T0}, 3")
    E(f"  s_and_b32 s{S_T2}, s{S_T0}, 7")
    E(f"  s_mul_i32 s{S_ST}, s{S_PART}, s{S_T1}")
    E(f"  s_min_u32 s{S_BASE}, s{S_PART}, s{S_T2}")
    E(f"  s_add_u32 s{S_ST}, s{S_ST}, s{S_BASE}")
    E(f"  s_cmp_lt_u32 s{S_PART}, s{S_T2}")
    E(f"  s_cselect_b32 s{S_BASE}, 1, 0")
    E(f"  s_add_u32 s{S_NSTEP}, s{S_T1}, s{S_BASE}")
    E(f"  s_mov_b32 s{S_IDX}, 0")
    E(f"  s_mov_b32 s{S_STRIDE}, 1")
    E(f"L_pro_common3:")
    E(f"  s_lshl_b32 s{S_T3}, s{S_ST}, 1")
    E(f"  v_add_u32 v12, s{S_T3}, v{VL}")
    E(f"  v_lshlrev_b32 v13, 3, v12")
    E(f"  v_and_b32 v13, 0x3ff, v13")
    E(f"  v_add_u32 v13, s{S_LIST}, v13")
    E(f"  s_waitcnt lgkmcnt(0)")
    E(f"  ds_read_b64 v[14:15], v13")
    E(f"  v_cmp_gt_u32 vcc, s{S_N}, v12")
    E(f"  v_mov_b32 v13, 0x100000")
    E(f"  v_mov_b32 v12, 2112")
    E(f"  s_waitcnt lgkmcnt(0)")
    E(f"  v_cndmask_b32 v{V_PHYS}, v12, v14, vcc")
    E(f"  v_cndmask_b32 v{V_J16}, v13, v15, vcc")
    E(f"  v_lshlrev_b32 v12, 2, v{VG}")
    E(f"  v_sub_u32 v{V_REM}, v{V_REM}, v12")
    if STAMP >= 2: emit_stamp()
    E(f"  s_cmp_ge_u32 s{S_IDX}, s{S_NSTEP}")
    E(f"  s_cbranch_scc1 L_zero_o")
    E(f"  s_cmp_eq_u32 s{S_SH}, 1")
    E(f"  s_cbranch_scc1 L_path_sh")
    for tag, nt in (("pr", " nt"), ("sh", "")):
        E(f"L_path_{tag}:")
        emit_next_offsets()
        emit_k_loads(nt)
        emit_v_loads(nt)
        E(f"  s_mov_b32 s{S_JA}, s{S_NJA}")
        E(f"  s_mov_b32 s{S_JB}, s{S_NJB}")
        for r in range(64):
            E(f"  v_mov_b32 v{V_O+r}, 0")
        emit_stamp()
        E(f"L_loop_{tag}:")
        emit_step(nt, tag)
        E(f"  s_cmp_lt_u32 s{S_IDX}, s{S_NSTEP}")
        E(f"  s_cbranch_scc1 L_loop_{tag}")
        E(f"  s_branch L_epilogue")
    E(f"L_zero_o:")
    for r in range(64):
        E(f"  v_mov_b32 v{V_O+r}, 0")
    E(f"L_epilogue:")
    E(f"  s_waitcnt vmcnt(0)")
    E(f"  s_nop 15")
    emit_xreduce(V_L, V_T, "v_add_f32")
    E(f"  v_and_b32 v{VL}, 63, v0")
    E(f"  v_and_b32 v{VCOL}, 15, v0")
    E(f"  v_lshrrev_b32 v{VG}, 4, v{VL}")
    E(f"  s_mov_b32 s{S_XSRD}, s30")
    E(f"  s_and_b32 s{S_XSRD+1}, s31, 0xffff")
    E(f"  s_mov_b32 s{S_XSRD+2}, {WS_BYTES}")
    E(f"  s_mov_b32 s{S_XSRD+3}, 0x00020000")
    lgs = NSLOT.bit_length() - 1
    E(f"  s_cmp_eq_u32 s{S_SH}, 1")
    E(f"  s_cbranch_scc1 L_epi_sh")
    SA = S_MASK
    SBI = S_MASK + 8
    for w in range(NPW):
        E(f"  s_cmp_lt_u32 {w}, s{S_W1}")
        E(f"  s_cselect_b32 s{SA+w}, 1.0, 0")
        E(f"  s_cselect_b32 s{SBI+w}, 0, 0xff800000")
    E(f"  v_lshlrev_b32 v12, 2, v0")
    E(f"  v_lshlrev_b32 v13, 2, v{VL}")
    E(f"  ds_write_b32 v12, v{V_M} offset:{LDS_M}")
    E(f"  s_waitcnt lgkmcnt(0)")
    E(f"  s_barrier")
    for w in range(NPW):
        E(f"  ds_read_b32 v{V_S+w}, v13 offset:{LDS_M + w*256}")
    E(f"  v_mov_b32 v14, 0xff800000")
    E(f"  v_mov_b32 v{V_P}, 0xff800000")
    E(f"  s_waitcnt lgkmcnt(0)")
    for w in range(NPW):
        E(f"  v_add_f32 v15, s{SBI+w}, v{V_S+w}")
        E(f"  v_max_f32 v14, v14, v15")
        E(f"  s_xor_b32 s{S_T0}, s{SBI+w}, 0xff800000")
        E(f"  v_add_f32 v15, s{S_T0}, v{V_S+w}")
        E(f"  v_max_f32 v{V_P}, v{V_P}, v15")
    E(f"  s_cmp_lt_u32 s{S_W}, s{S_W1}")
    E(f"  s_cselect_b64 vcc, -1, 0")
    E(f"  v_cndmask_b32 v15, v{V_P}, v14, vcc")
    E(f"  v_max_f32 v15, 0xff7fffff, v15")
    E(f"  v_mul_f32 v15, s{S_C}, v15")
    E(f"  v_fma_f32 v15, v{V_M}, s{S_C}, -v15")
    E(f"  v_exp_f32 v15, v15")
    E(f"  s_nop 0")
    E(f"  v_mul_f32 v{V_L}, v{V_L}, v15")
    for r in range(64):
        E(f"  v_mul_f32 v{V_O+r}, v{V_O+r}, v15")
    E(f"  ds_write_b32 v12, v{V_L} offset:{LDS_L}")
    E(f"  s_lshl_b32 s{S_T0}, s{S_W}, 11")
    E(f"  v_lshl_add_u32 v15, v{VG}, 1, v{VCOL}")
    E(f"  v_lshlrev_b32 v15, 4, v15")
    E(f"  v_add_u32 v15, s{S_T0}, v15")
    E(f"  v_cmp_gt_u32 vcc, 2, v{VCOL}")
    E(f"  s_nop 4")
    E(f"  s_mov_b64 exec, vcc")
    for qd in range(16):
        E(f"  ds_write_b128 v15, {q4(V_O+4*qd)} offset:{LDS_O + qd*128}")
    E(f"  s_mov_b64 exec, -1")
    E(f"  s_waitcnt lgkmcnt(0)")
    E(f"  s_barrier")
    E(f"  v_lshlrev_b32 v12, 2, v0")
    for w in range(NPW):
        E(f"  ds_read_b32 v{V_S+w}, v12 offset:{LDS_O + w*2048}")
    E(f"  s_cmp_lg_u32 s{S_W}, 0")
    E(f"  s_cbranch_scc1 L_epi_pr1")
    for w in range(NPW):
        E(f"  ds_read_b32 v{V_K+w}, v12 offset:{LDS_O + w*2048 + 448*4}")
    for w in range(NPW):
        E(f"  ds_read_b32 v{V_K+8+w}, v13 offset:{LDS_L + w*256}")
    E(f"L_epi_pr1:")
    def addr(tv, dst):
        E(f"  v_lshrrev_b32 v{V_V}, 5, v{tv}")
        E(f"  v_bfe_u32 v{V_V+1}, v{tv}, 2, 3")
        E(f"  v_and_b32 v{V_V+2}, 3, v{tv}")
        E(f"  v_lshrrev_b32 v{V_V+3}, 3, v{V_V}")
        E(f"  v_lshlrev_b32 v{V_V+3}, 7, v{V_V+3}")
        E(f"  v_and_b32 v{V_V}, 7, v{V_V}")
        E(f"  v_add_u32 v{V_V+3}, v{V_V+3}, v{V_V}")
        E(f"  v_lshl_add_u32 v{V_V+3}, v{V_V+2}, 3, v{V_V+3}")
        E(f"  v_lshrrev_b32 v{V_V}, 1, v{V_V+1}")
        E(f"  v_lshl_add_u32 v{V_V+3}, v{V_V}, 5, v{V_V+3}")
        E(f"  v_and_b32 v{V_V+1}, 1, v{V_V+1}")
        E(f"  v_lshlrev_b32 v{V_V+1}, {lgs+10}, v{V_V+1}")
        E(f"  v_lshl_add_u32 v{dst}, v{V_V+3}, 2, v{V_V+1}")
    for sb, dst in ((S_BL, S_T2), (S_BS, S_T3)):
        E(f"  s_lshl_b32 s{dst}, s{sb}, 4")
        if sb == S_BS and MIX:
            E(f"  s_xor_b32 s{S_T0}, s{S_KVH}, 1")
            E(f"  s_lshl_b32 s{S_T0}, s{S_T0}, 1")
        else:
            E(f"  s_lshl_b32 s{S_T0}, s{S_KVH}, 1")
        E(f"  s_add_u32 s{dst}, s{dst}, s{S_T0}")
        E(f"  s_lshl_b32 s{dst}, s{dst}, {lgs}")
        E(f"  s_add_u32 s{dst}, s{dst}, s{S_HALF}")
        E(f"  s_lshl_b32 s{dst}, s{dst}, 10")
    def twosum(base, da, db):
        E(f"  v_mul_f32 v{da}, s{SA}, v{base}")
        E(f"  v_mov_b32 v{db}, v{base}")
        for w in range(1, NPW):
            E(f"  v_fma_f32 v{da}, v{base+w}, s{SA+w}, v{da}")
            E(f"  v_add_f32 v{db}, v{db}, v{base+w}")
        E(f"  v_sub_f32 v{db}, v{db}, v{da}")
    addr(0, V_V+4)
    E(f"  s_waitcnt lgkmcnt(0)")
    def twosum_exact(base, da, db):
        E(f"  v_mov_b32 v{da}, 0")
        E(f"  v_mov_b32 v{db}, 0")
        for w in range(NPW):
            E(f"  v_fma_f32 v{da}, v{base+w}, s{SA+w}, v{da}")
            E(f"  s_xor_b32 s{S_T0}, s{SA+w}, 0x3f800000")
            E(f"  v_fma_f32 v{db}, v{base+w}, s{S_T0}, v{db}")
    twosum_exact(V_S, V_V+6, V_V+7)
    E(f"  buffer_store_dword v{V_V+6}, v{V_V+4}, s[{S_XSRD}:{S_XSRD+3}], s{S_T2} offen")
    E(f"  buffer_store_dword v{V_V+7}, v{V_V+4}, s[{S_XSRD}:{S_XSRD+3}], s{S_T3} offen")
    E(f"  s_cmp_lg_u32 s{S_W}, 0")
    E(f"  s_cbranch_scc1 L_epi_done")
    E(f"  v_add_u32 v12, 448, v{VL}")
    addr(12, V_V+5)
    twosum_exact(V_K, V_V+8, V_V+9)
    E(f"  buffer_store_dword v{V_V+8}, v{V_V+5}, s[{S_XSRD}:{S_XSRD+3}], s{S_T2} offen")
    E(f"  buffer_store_dword v{V_V+9}, v{V_V+5}, s[{S_XSRD}:{S_XSRD+3}], s{S_T3} offen")
    twosum_exact(V_K+8, 15, V_P+1)
    E(f"  v_lshlrev_b32 v12, {lgs+3}, v{VL}")
    E(f"  s_lshr_b32 s{S_T2}, s{S_T2}, 7")
    E(f"  s_lshr_b32 s{S_T3}, s{S_T3}, 7")
    E(f"  s_add_u32 s{S_T2}, s{S_T2}, {WS_ML_OFF}")
    E(f"  s_add_u32 s{S_T3}, s{S_T3}, {WS_ML_OFF}")
    E(f"  s_mov_b64 exec, 3")
    E(f"  buffer_store_dwordx2 v[14:15], v12, s[{S_XSRD}:{S_XSRD+3}], s{S_T2} offen")
    E(f"  buffer_store_dwordx2 v[{V_P}:{V_P+1}], v12, s[{S_XSRD}:{S_XSRD+3}], s{S_T3} offen")
    E(f"  s_branch L_epi_done")
    E(f"L_epi_sh:")
    E(f"  v_lshrrev_b32 v{VBL}, 1, v{VCOL}")
    E(f"  s_lshl_b32 s{S_T0}, s{S_BQ}, 3")
    E(f"  v_add_u32 v{VBL}, s{S_T0}, v{VBL}")
    E(f"  v_and_b32 v14, 1, v{VCOL}")
    E(f"  v_lshl_add_u32 v14, v{VBL}, 4, v14")
    E(f"  s_lshl_b32 s{S_T0}, s{S_KVW}, 1")
    E(f"  v_add_u32 v14, s{S_T0}, v14")
    E(f"  v_lshlrev_b32 v14, {lgs}, v14")
    E(f"  v_add_u32 v14, s{S_SLOT}, v14")
    E(f"  v_lshlrev_b32 v15, 10, v14")
    E(f"  v_lshl_add_u32 v15, v{VG}, 7, v15")
    E(f"  v_lshlrev_b32 v14, 3, v14")
    E(f"  v_add_u32 v14, {WS_ML_OFF}, v14")
    for hf in range(2):
        for r in range(4):
            base = V_K + (hf*4 + r) * 8
            for jj in range(8):
                E(f"  v_mov_b32 v{base+jj}, v{oreg(hf,jj)+r}")
    for hf in range(2):
        for r in range(4):
            base = V_K + (hf*4 + r) * 8
            for half in range(2):
                E(f"  buffer_store_dwordx4 {q4(base+4*half)}, v15, s[{S_XSRD}:{S_XSRD+3}], 0 offen offset:{hf*512 + r*32 + half*16}")
    E(f"  v_mov_b32 v12, v{V_M}")
    E(f"  v_mov_b32 v13, v{V_L}")
    E(f"  s_mov_b64 exec, 0xffff")
    E(f"  buffer_store_dwordx2 v[12:13], v14, s[{S_XSRD}:{S_XSRD+3}], 0 offen")
    E(f"  s_mov_b64 exec, -1")
    E(f"  s_barrier")
    E(f"  s_barrier")
    E(f"L_epi_done:")
    if STAMP:
        emit_stamp()
        E(f"  s_mov_b64 exec, -1")
        E(f"  s_lshl_b32 s99, s2, 3")
        E(f"  s_add_u32 s99, s99, s{S_W}")
        E(f"  s_lshl_b32 s99, s99, 8")
        E(f"  s_add_u32 s99, s99, 0xa00000")
        E(f"  v_and_b32 v253, 63, v0")
        E(f"  v_lshlrev_b32 v253, 2, v253")
        E(f"  v_add_u32 v253, s99, v253")
        E(f"  global_store_dword v253, v252, s[30:31]")
    E(f"L_main_end:")
    E(f"  s_endpgm")

def combine_kernel():
    MASKRAW = -998244352.0 * 16.0
    E(f".globl combine_kernel")
    E(f".p2align 8")
    E(f".type combine_kernel,@function")
    E(f"combine_kernel:")
    E(f"  s_cmp_ge_u32 s2, 128")
    E(f"  s_cbranch_scc1 L_cmb_end")
    E(f"  s_load_dwordx16 s[16:31], s[0:1], 0")
    E(f"  v_lshrrev_b32 v1, 6, v0")
    E(f"  v_and_b32 v2, 63, v0")
    E(f"  s_nop 0")
    E(f"  v_readfirstlane_b32 s3, v1")
    E(f"  s_lshl_b32 s4, s2, 2")
    E(f"  s_nop 2")
    E(f"  s_add_u32 s4, s4, s3")
    E(f"  s_mov_b32 s56, {f2u(C_SCALE):#x}")
    E(f"  s_waitcnt lgkmcnt(0)")
    E(f"  s_lshl_b32 s5, s4, {(NSLOT*8).bit_length()-1}")
    E(f"  s_add_u32 s5, s5, {WS_ML_OFF}")
    E(f"  s_load_dwordx16 s[32:47], s[30:31], s5")
    E(f"  s_add_u32 s5, s5, 64")
    E(f"  s_load_dwordx4 s[48:51], s[30:31], s5")
    E(f"  s_lshr_b32 s6, s4, 4")
    E(f"  s_lshl_b32 s7, s6, 2")
    E(f"  s_load_dword s52, s[24:25], s7")
    E(f"  s_mov_b32 s8, s30")
    E(f"  s_and_b32 s9, s31, 0xffff")
    E(f"  s_mov_b32 s10, {WS_BYTES}")
    E(f"  s_mov_b32 s11, 0x00020000")
    E(f"  s_lshl_b32 s12, s4, {10 + NSLOT.bit_length()-1}")
    E(f"  s_add_u32 s13, s12, 4096")
    E(f"  s_add_u32 s14, s12, 8192")
    E(f"  v_lshlrev_b32 v3, 4, v2")
    for s in range(NUSED):
        E(f"  buffer_load_dwordx4 v[{8+4*s}:{11+4*s}], v3, s[8:11], s{12 + (s>>2)} offen offset:{(s&3)*1024}")
    E(f"  s_waitcnt lgkmcnt(0)")
    E(f"  v_mov_b32 v4, s32")
    for s in range(1, NUSED):
        E(f"  v_max_f32 v4, s{32+2*s}, v4")
    E(f"  s_max_i32 s52, s52, 0")
    E(f"  s_min_i32 s52, s52, 2048")
    E(f"  s_sub_u32 s53, 2048, s52")
    E(f"  s_mov_b32 s54, 0")
    E(f"  s_cmp_eq_u32 s53, 0")
    E(f"  s_cbranch_scc1 L_cmb_fast")
    E(f"  v_cmp_gt_f32 vcc, {f2u(MASKRAW + 2048.0):#x}, v4")
    E(f"  s_nop 4")
    E(f"  s_cbranch_vccz L_cmb_fast")
    E(f"  s_mov_b32 s54, 1")
    E(f"  v_max_f32 v4, {f2u(MASKRAW):#x}, v4")
    E(f"L_cmb_fast:")
    E(f"  v_max_f32 v4, 0xff7fffff, v4")
    E(f"  v_mul_f32 v5, s56, v4")
    E(f"  v_mov_b32 v6, 0")
    A = 48
    assert 8 + 4*NUSED <= A
    for k in range(4):
        E(f"  v_mov_b32 v{A+k}, 0")
    E(f"  s_waitcnt vmcnt(0)")
    for s in range(NUSED):
        E(f"  v_mov_b32 v7, s{32+2*s}")
        E(f"  v_fma_f32 v7, v7, s56, -v5")
        E(f"  v_exp_f32 v7, v7")
        E(f"  s_nop 0")
        E(f"  v_fma_f32 v6, v7, s{33+2*s}, v6")
        for k in range(4):
            E(f"  v_fma_f32 v{A+k}, v7, v{8+4*s+k}, v{A+k}")
    E(f"  s_cmp_eq_u32 s54, 0")
    E(f"  s_cbranch_scc1 L_cmb_out")
    E(f"  v_mov_b32 v7, {f2u(MASKRAW):#x}")
    E(f"  v_fma_f32 v7, v7, s56, -v5")
    E(f"  v_exp_f32 v7, v7")
    E(f"  v_cvt_f32_u32 v52, s53")
    E(f"  v_fma_f32 v6, v7, v52, v6")
    E(f"  s_mov_b32 s8, s20")
    E(f"  s_and_b32 s9, s21, 0xffff")
    E(f"  s_mov_b32 s10, {KV_BYTES}")
    E(f"  s_mov_b32 s11, 0x00020000")
    E(f"  s_and_b32 s13, s4, 15")
    E(f"  s_lshr_b32 s13, s13, 1")
    E(f"  s_lshl_b32 s13, s13, 9")
    E(f"  v_lshlrev_b32 v3, 3, v2")
    for k in range(4):
        E(f"  v_mov_b32 v{54+k}, 0")
    E(f"L_cmb_slow:")
    E(f"  s_lshr_b32 s14, s52, 4")
    E(f"  s_lshl_b32 s14, s14, 2")
    E(f"  s_lshl_b32 s15, s6, 9")
    E(f"  s_add_u32 s14, s14, s15")
    E(f"  s_load_dword s15, s[22:23], s14")
    E(f"  s_waitcnt lgkmcnt(0)")
    E(f"  s_lshl_b32 s15, s15, 16")
    E(f"  s_and_b32 s14, s52, 15")
    E(f"  s_lshl_b32 s14, s14, 12")
    E(f"  s_add_u32 s15, s15, s14")
    E(f"  s_add_u32 s15, s15, s13")
    E(f"  buffer_load_dwordx2 v[58:59], v3, s[8:11], s15 offen")
    E(f"  s_waitcnt vmcnt(0)")
    E(f"  v_lshlrev_b32 v60, 16, v58")
    E(f"  v_and_b32 v61, 0xffff0000, v58")
    E(f"  v_lshlrev_b32 v62, 16, v59")
    E(f"  v_and_b32 v63, 0xffff0000, v59")
    for k in range(4):
        E(f"  v_add_f32 v{54+k}, v{54+k}, v{60+k}")
    E(f"  s_add_u32 s52, s52, 1")
    E(f"  s_cmp_lt_u32 s52, 2048")
    E(f"  s_cbranch_scc1 L_cmb_slow")
    for k in range(4):
        E(f"  v_fma_f32 v{A+k}, v7, v{54+k}, v{A+k}")
    E(f"L_cmb_out:")
    E(f"  v_rcp_f32 v6, v6")
    E(f"  s_nop 0")
    for k in range(4):
        E(f"  v_mul_f32 v{A+k}, v{A+k}, v6")
    E(f"  v_cvt_pk_bf16_f32 v52, v{A}, v{A+1}")
    E(f"  v_cvt_pk_bf16_f32 v53, v{A+2}, v{A+3}")
    E(f"  s_mov_b32 s8, s26")
    E(f"  s_and_b32 s9, s27, 0xffff")
    E(f"  s_mov_b32 s10, {512*512}")
    E(f"  s_mov_b32 s11, 0x00020000")
    E(f"  s_lshl_b32 s12, s4, 9")
    E(f"  v_lshlrev_b32 v3, 3, v2")
    E(f"  buffer_store_dwordx2 v[52:53], v3, s[8:11], s12 offen")
    E(f"L_cmb_end:")
    E(f"  s_endpgm")

def kd(name, vgpr, sgpr):
    E(f".amdhsa_kernel {name}")
    E(f"  .amdhsa_next_free_vgpr {vgpr}")
    E(f"  .amdhsa_next_free_sgpr {sgpr}")
    E(f"  .amdhsa_accum_offset {(vgpr+3)//4*4}")
    E(f"  .amdhsa_group_segment_fixed_size 0")
    E(f"  .amdhsa_kernarg_size 64")
    E(f"  .amdhsa_user_sgpr_count 2")
    E(f"  .amdhsa_user_sgpr_kernarg_segment_ptr 1")
    E(f"  .amdhsa_system_sgpr_workgroup_id_x 1")
    E(f"  .amdhsa_float_denorm_mode_32 3")
    E(f".end_amdhsa_kernel")

hdr = open("cdna_kernels/" + NAME + ".s.ref").read().split("; Override launch")[0]
E(hdr.rstrip())
E(f"; @launch kernel={NAME}_kernel grid=({NWG},1,1) block=({NW*64},1,1) lds={LDS_BYTES}")
E(f"; @launch kernel=combine_kernel grid=(128,1,1) block=(256,1,1) lds=0")
E('.amdgcn_target "amdgcn-amd-amdhsa--gfx950"')
E(".text")
main_kernel()
combine_kernel()
E('.section .rodata,"a"')
E(".p2align 6")
kd(f"{NAME}_kernel", V_END, S_END)
E(".p2align 6")
kd("combine_kernel", 64, 60)
open(sys.argv[1] if len(sys.argv) > 1 else "cdna_kernels/" + NAME + ".s", "w").write("\n".join(out) + "\n")
```
